```python
import torch

def _softmax(x, axis=-1):
    return torch.softmax(x, dim=axis)
def _gelu(x):
    return torch.nn.functional.gelu(x, approximate="tanh")
def _silu(x):
    return torch.nn.functional.silu(x)
def _sigmoid(x):
    return torch.sigmoid(x)
def _layernorm(x, axis=-1, eps=1e-5):
    m = x.mean(dim=axis, keepdim=True)
    v = x.var(dim=axis, keepdim=True, unbiased=False)
    return (x - m) / torch.sqrt(v + eps)
def _scatter_add(tgt, idx, src, axis=0):
    return tgt.clone().index_add_(axis, idx, src)
def _segment_sum(src, seg, n):
    out = torch.zeros((n,) + src.shape[1:], dtype=src.dtype)
    return out.index_add_(0, seg, src)
def _pad(x, pw):
    flat = tuple(v for pair in reversed(pw) for v in pair)
    return torch.nn.functional.pad(x, flat)

kernel_name = 'gated_mix__ssm_conv_s4d__glu_gated_geglu__prompt'

def setup_inputs():

    _w = (lambda a: (lambda t: t.to(torch.bfloat16) if t.is_floating_point() else t)(torch.as_tensor(a)))
    def _A_setup():
        Bsz, L, D, N = 1, 2048, 512, 128
        return {
            "u": _w((lambda *s: torch.randn(*s, dtype=torch.bfloat16) * 0.05)(Bsz, L, D)),
            "log_A_real": _w((lambda *s: torch.randn(*s, dtype=torch.bfloat16) * 6.4)(D, N) * 0.5),
            "A_imag": _w((lambda *s: torch.randn(*s, dtype=torch.bfloat16) * 0.05)(D, N) * 3.14),
            "C_real": _w((lambda *s: torch.randn(*s, dtype=torch.bfloat16) * 0.05)(D, N) / N ** 0.5),
            "C_imag": _w((lambda *s: torch.randn(*s, dtype=torch.bfloat16) * 0.05)(D, N) / N ** 0.5),
            "log_dt": _w((lambda *s: torch.randn(*s, dtype=torch.bfloat16) * 0.05)(D) * 0.5 - 4.0),
            "D_skip": _w((lambda *s: torch.randn(*s, dtype=torch.bfloat16) * 0.05)(D)),
        }
    _A_in = _A_setup()

    def _B_setup():
        B, S, Dm, Df = 1, 2048, 512, 1376
        return {
            "x": _w((lambda *s: torch.randn(*s, dtype=torch.bfloat16) * 0.05)(B, S, Dm)),
            "w_gate": _w((lambda *s: torch.randn(*s, dtype=torch.bfloat16) * 1.6)(Dm, Df) * (Dm ** -0.5)),
            "w_up": _w((lambda *s: torch.randn(*s, dtype=torch.bfloat16) * 1.6)(Dm, Df) * (Dm ** -0.5)),
            "w_down": _w((lambda *s: torch.randn(*s, dtype=torch.bfloat16) * 1.6)(Df, Dm) * (Df ** -0.5)),
        }
    _B_in = _B_setup()

    return {
        "A_u": _A_in["u"],
        "A_log_A_real": _A_in["log_A_real"],
        "A_A_imag": _A_in["A_imag"],
        "A_C_real": _A_in["C_real"],
        "A_C_imag": _A_in["C_imag"],
        "A_log_dt": _A_in["log_dt"],
        "A_D_skip": _A_in["D_skip"],
        "B_x": _B_in["x"],
        "B_w_gate": _B_in["w_gate"],
        "B_w_up": _B_in["w_up"],
        "B_w_down": _B_in["w_down"],
        "gate_w": _w((lambda *s: torch.randn(*s, dtype=torch.bfloat16) * 0.05)(512) * 16.0),
    }

def reference(A_u, A_log_A_real, A_A_imag, A_C_real, A_C_imag, A_log_dt, A_D_skip, B_x, B_w_gate, B_w_up, B_w_down, gate_w):
    def _A_ref(u, log_A_real, A_imag, C_real, C_imag, log_dt, D_skip):
        L = u.shape[1]
        dt = torch.exp(log_dt)
        A = -torch.exp(log_A_real) + 1j * A_imag
        C = (C_real + 1j * C_imag) * dt[:, None]
        pos = (lambda x, dt: x.to(dt))(torch.arange(L), log_dt.dtype)
        P = torch.exp((A * dt[:, None])[:, :, None] * pos[None, None, :])
        K = 2.0 * torch.einsum("dn,dnl->dl", C, P).real
        L2 = 2 * L
        u_t = (lambda x, *d: x.permute(*d))(u, 0, 2, 1)
        Kf = (lambda x, *a, **k: torch.fft.rfft(x.float(), *a, **k))(K, L2)
        Uf = (lambda x, *a, **k: torch.fft.rfft(x.float(), *a, **k))(u_t, L2)
        y = (lambda x, *a, **k: torch.fft.irfft(x, *a, **k).to(torch.bfloat16))(Uf * Kf[None, :, :], L2)[:, :, :L]
        y = (lambda x, *d: x.permute(*d))(y, 0, 2, 1)
        return y + u * D_skip[None, None, :]

    def _B_ref(x, w_gate, w_up, w_down):
        g = torch.einsum("bsd,df->bsf", x, w_gate)
        u = torch.einsum("bsd,df->bsf", x, w_up)
        h = _gelu(g) * u
        return torch.einsum("bsf,fd->bsd", h, w_down)

    x = A_u
    g = _sigmoid((x * gate_w).sum(-1, keepdims=True))
    a = _A_ref(x, A_log_A_real, A_A_imag, A_C_real, A_C_imag, A_log_dt, A_D_skip)
    b = _B_ref(x, B_w_gate, B_w_up, B_w_down)
    return g * a + (1 - g) * b
```

```python
import re

TRANS = ("v_exp_f32","v_log_f32","v_rcp_f32","v_rsq_f32","v_sqrt_f32","v_sin_f32","v_cos_f32")

def _regs(tok):
    tok = tok.strip()
    neg = tok.lstrip('-')
    m = re.fullmatch(r"(?:abs\()?\|?([vas])(\d+)\|?\)?", neg)
    if m: return [(m.group(1), int(m.group(2)))]
    m = re.fullmatch(r"([vas])\[(\d+):(\d+)\]", neg)
    if m: return [(m.group(1), i) for i in range(int(m.group(2)), int(m.group(3))+1)]
    if neg in ("vcc","exec","m0","scc"): return [(neg,0)]
    if neg in ("vcc_lo","vcc_hi"): return [("vcc",0)]
    if neg in ("exec_lo","exec_hi"): return [("exec",0)]
    return []

def split_ops(rest):
    ops=[]; depth=0; cur=""
    for ch in rest:
        if ch in "[(": depth+=1
        if ch in "])": depth-=1
        if ch=="," and depth==0:
            ops.append(cur.strip()); cur=""
        else: cur+=ch
    if cur.strip(): ops.append(cur.strip())
    if ops:
        parts = ops[-1].split()
        ops[-1] = parts[0]
        mods = parts[1:]
    else: mods=[]
    return ops, mods

class I:
    __slots__=("txt","mn","defs","uses","kind","mods","passes","srcc","ab","ws")
    def __init__(self, txt):
        self.txt = txt
        t = txt.split(";")[0].strip()
        self.defs=set(); self.uses=set(); self.kind="other"; self.mods=[]; self.passes=0; self.srcc=set(); self.ab=set(); self.ws=1
        if not t or t.endswith(":") or t.startswith("."):
            self.mn=""; self.kind="label" if t.endswith(":") else "none"; self.ws=0; return
        sp = t.split(None,1)
        mn = sp[0]; self.mn = mn
        ops, mods = split_ops(sp[1]) if len(sp)>1 else ([],[])
        self.mods = mods
        R = [set(_regs(o)) for o in ops]
        base = re.sub(r"_(e32|e64|dpp|sdwa)$","",mn)
        if mn=="s_nop":
            self.kind="nop"; self.ws=int(ops[0],0)+1; return
        if mn.startswith("v_mfma"):
            self.kind="mfma"; self.defs=R[0]; self.ab=R[1]|R[2]; self.srcc=R[3]; self.uses=self.ab|self.srcc
            self.passes = 8 if "32x32" in mn else 4
            return
        if mn.startswith("v_"):
            self.kind="trans" if base in TRANS else "valu"
            if base in ("v_add_co_u32","v_sub_co_u32","v_subrev_co_u32","v_addc_co_u32","v_subb_co_u32","v_mad_u64_u32"):
                self.defs=R[0]|R[1]; self.uses=set().union(*R[2:]) if len(R)>2 else set()
            elif base.startswith("v_permlane") and "swap" in base:
                self.defs=R[0]|R[1]; self.uses=R[0]|R[1]; self.kind="valu"
            elif base=="v_nop": pass
            else:
                self.defs=R[0]; self.uses=set().union(*R[1:]) if len(R)>1 else set()
                if base in ("v_fmac_f32","v_pk_fmac_f16","v_writelane_b32","v_dot2c_f32_bf16"): self.uses|=R[0]
                if base=="v_cndmask_b32" and len(ops)==3: self.uses.add(("vcc",0))
                if base.startswith("v_cmpx"): self.defs.add(("exec",0))
            return
        if mn.startswith("ds_"):
            self.kind="ds"
            if mn.startswith("ds_read") or mn.startswith("ds_bpermute") or mn.startswith("ds_permute") or mn.startswith("ds_swizzle") or "_rtn" in mn:
                self.defs=R[0]; self.uses=set().union(*R[1:])
            else:
                self.uses=set().union(*R)
            if "addtid" in mn: self.uses=self.uses|{("m0",0)}
            return
        if mn.startswith("buffer_") or mn.startswith("global_"):
            self.kind="vmem"
            allr = set().union(*R) if R else set()
            if "lds" in mods or "_lds_" in mn:
                self.uses=allr|{("m0",0)}; self.kind="dma"
            elif "_load" in mn:
                self.defs=R[0]; self.uses=set().union(*R[1:])
            elif "_atomic" in mn and "sc0" in mods:
                self.defs=R[0]; self.uses=allr
            else:
                self.uses=allr
            return
        if mn.startswith("s_"):
            self.kind="salu"
            nod = ("s_cmp","s_waitcnt","s_barrier","s_branch","s_cbranch","s_endpgm","s_setprio","s_sleep","s_bitcmp","s_setreg","s_sendmsg")
            if mn.startswith(nod):
                self.uses=set().union(*R) if R else set()
            else:
                self.defs=R[0] if R else set(); self.uses=set().union(*R[1:]) if len(R)>1 else set()
                if "saveexec" in mn: self.defs|={("exec",0)}
            if mn.startswith("s_load") or mn.startswith("s_memtime") or mn.startswith("s_memrealtime") or mn.startswith("s_buffer_load"): self.kind="smem"
            return

def is_valu(i): return i.kind in ("valu","trans")
def sg(regs): return {r for r in regs if r[0] in ("s","vcc")}
def vg(regs): return {r for r in regs if r[0] in ("v","a")}

def need(p, c):
    n=0
    if p.kind=="mfma":
        P=p.passes
        D=p.defs
        if c.kind=="mfma":
            if D & c.ab: n=max(n, {4:8,8:12}[P])
            if D & c.srcc:
                if not (c.srcc==D and c.passes==P): n=max(n,{4:6,8:10}[P])
            elif D & c.defs: n=max(n,{4:6,8:10}[P])
        elif c.kind in ("valu","trans","ds","vmem","dma"):
            if D & (c.uses|c.defs): n=max(n,{4:8,8:12}[P])
            if is_valu(c) and (p.srcc & c.defs): n=max(n,{4:3,8:7}[P])
    if is_valu(p):
        if c.kind=="mfma" and (vg(p.defs) & c.uses): n=max(n,2)
        if c.kind=="mfma" and ("exec",0) in p.defs: n=max(n,4)
        if p.kind=="trans" and c.kind=="valu" and (p.defs & c.uses): n=max(n,1)
        s=sg(p.defs)
        if s:
            if is_valu(c) and (s & c.uses):
                n=max(n, 4 if c.mn.startswith(("v_readlane","v_writelane")) else 2)
            if c.kind in ("vmem","dma") and (s & c.uses): n=max(n,5)
        if vg(p.defs) & c.uses:
            if c.mn.startswith(("v_readlane","v_readfirstlane")): n=max(n,1)
            if c.mn.startswith("v_permlane"): n=max(n,2)
            if "dpp" in c.mn or any(m.startswith(("row_","quad_perm","wave_")) for m in c.mods): n=max(n,2)
            if is_valu(c) and ("sdwa" in p.mn or any(m.startswith("dst_sel") for m in p.mods)): n=max(n,1)
    if p.kind=="salu" and ("m0",0) in p.defs and ("m0",0) in c.uses and c.kind in ("dma","ds"): n=max(n,1)
    if p.kind=="vmem" and ("store" in p.mn or "atomic" in p.mn) and ("x4" in p.mn or "x3" in p.mn):
        if vg(p.uses) & c.defs:
            n=max(n, 2 if is_valu(c) else 1)
    return n

def fix_hazards(lines):
    out=[]; hist=[]
    for ln in lines:
        c=I(ln)
        if c.ws==0:
            out.append(ln); continue
        dist=0; req=0
        for p in reversed(hist[-24:]):
            r=need(p,c)-dist
            if r>req: req=r
            dist+=p.ws
            if dist>=20: break
        while req>0:
            k=min(req,16)
            nop=f"    s_nop {k-1}"
            out.append(nop); hist.append(I(nop)); req-=k
        out.append(ln); hist.append(c)
    return out

class Prog:
    def __init__(self):
        self.L=[]; self.vm=[]; self.lg=[]
    def __call__(self, s):
        for x in s.strip("\n").split("\n"):
            x=x.strip()
            if not x: continue
            self.L.append(x if x.endswith(":") else "    "+x)
    _u=[0]
    def uid(self):
        Prog._u[0]+=1; self.last=Prog._u[0]; return self.last
    def label(self, l): self.L.append(l+":")
    def c(self, s): self.L.append("    ; "+s)
    def v(self, s, tag=None):
        self(s); self.vm.append(tag)
    def d(self, s, tag=None):
        self(s); self.lg.append(tag)
    def _cnt(self, q, tag):
        idx=None
        for i,t in enumerate(q):
            if t==tag or (isinstance(tag,(list,tuple,set)) and t in tag): idx=i
        if idx is None: return None
        n=len(q)-1-idx
        del q[:idx+1]
        return n
    def wait(self, vm=None, lg=None):
        parts=[]
        if vm is not None:
            if vm=="all": n=0; self.vm.clear()
            else: n=self._cnt(self.vm,vm)
            if n is not None: parts.append(f"vmcnt({min(n,63)})")
        if lg is not None:
            if lg=="all": n=0; self.lg.clear()
            else: n=self._cnt(self.lg,lg)
            if n is not None: parts.append(f"lgkmcnt({min(n,15)})")
        if parts: self("s_waitcnt "+" ".join(parts))

def vr(a,n=1): return f"v{a}" if n==1 else f"v[{a}:{a+n-1}]"
def sr(a,n=1): return f"s{a}" if n==1 else f"s[{a}:{a+n-1}]"

def kernel_text(name, lines, vgpr=256, sgpr=102):
    body="\n".join(fix_hazards(lines))
    acc=(vgpr+3)//4*4
    return f""".text
.globl {name}
.p2align 8
.type {name},@function
{name}:
{body}
.section .rodata,"a"
.p2align 6
.amdhsa_kernel {name}
  .amdhsa_next_free_vgpr {vgpr}
  .amdhsa_next_free_sgpr {sgpr}
  .amdhsa_accum_offset {min(acc,256)}
  .amdhsa_group_segment_fixed_size 0
  .amdhsa_kernarg_size 120
  .amdhsa_user_sgpr_count 2
  .amdhsa_user_sgpr_kernarg_segment_ptr 1
  .amdhsa_system_sgpr_workgroup_id_x 1
.end_amdhsa_kernel
"""
```

```python
from asmlib import *
H_OFF   = 0x0
H_BYTES = 64*86*1024
WDF_OFF = 0x600000
WDF_BYTES = 16*88*1024
UT_OFF  = 0x800000
KX_OFF  = 0xA00000
KX_CH   = 8320
YT_OFF  = 0xF00000
G_OFF   = 0x1100000
ST_OFF  = 0x1200000
def P(i): return 32+2*i
P_U,P_LOGA,P_AIM,P_CR,P_CI,P_LDT,P_DSK,P_BX,P_WG,P_WU,P_WD,P_GW = [P(i) for i in range(12)]
P_OUT,P_DBG,P_WS = 56,58,60

def load_args(p):
    p("""s_load_dwordx16 s[32:47], s[0:1], 0
    s_load_dwordx8 s[48:55], s[0:1], 64
    s_load_dwordx4 s[56:59], s[0:1], 96
    s_load_dwordx2 s[60:61], s[0:1], 112""")

def srd(p, d, ptr, nbytes, off=0):
    if off:
        p(f"s_add_u32 s{d}, s{ptr}, {off:#x}")
        p(f"s_addc_u32 s{d+1}, s{ptr+1}, 0")
    else:
        p(f"s_mov_b32 s{d}, s{ptr}")
        p(f"s_mov_b32 s{d+1}, s{ptr+1}")
    p(f"s_mov_b32 s{d+2}, {nbytes:#x}")
    p(f"s_mov_b32 s{d+3}, 0x20000")

class Stamps:
    def __init__(self, on): self.on=on
    def take(self, p, k):
        if self.on:
            p(f"{'s_memtime' if self.on=='cyc' else 's_memrealtime'} s[{80+2*k}:{81+2*k}]")
    def flush(self, p, n, base_off, wg="s2", wave="s3"):
        if not self.on: return
        p("s_waitcnt lgkmcnt(0)")
        srd(p, 96, P_WS, 0x100000, ST_OFF+base_off)
        p(f"s_lshl_b32 s100, {wg}, 3")
        p(f"s_add_u32 s100, s100, {wave}")
        p(f"s_lshl_b32 s100, s100, 6")
        p("v_mov_b32 v250, 0")
        for k in range(n):
            p(f"v_mov_b32 v251, s{80+2*k}")
            p(f"buffer_store_dword v251, v250, s[96:99], s100 offen offset:{4*k}")
        p("s_waitcnt vmcnt(0)")

def code_prefetch(p, start, end, s_idx, tmp=250, nld=1, stride=32):
    u=p.uid()
    p(f"s_getpc_b64 s[26:27]")
    p.label(f"pf{u}")
    p(f"s_sub_u32 s26, s26, pf{u}-{start}")
    p(f"s_subb_u32 s27, s27, 0")
    p(f"s_lshl_b32 s28, s{s_idx}, 10")
    p(f"v_lshl_add_u32 v{tmp}, v1, 4, s28")
    p(f"v_mov_b32 v{tmp+1}, {end}-{start}-16")
    for i in range(nld):
        if i: p(f"v_add_u32 v{tmp}, {stride*1024}, v{tmp}")
        p(f"v_min_u32 v{tmp-1-i}, v{tmp}, v{tmp+1}")
        p(f"global_load_dwordx4 v[{tmp+2}:{tmp+5}], v{tmp-1-i}, s[26:27]")
```

```python
from common import *
from kgen import *
import os
SLOT = 41216
XO, WGO, WUO = 0, 16384, 16384+12288+32
NST = 8
LDS_A = 163840
KSC  = 0
KXL  = 4*TBL
RING = 34816
SB = [RING, RING+SLOT, RING+2*SLOT]
assert RING+3*SLOT <= LDS_A
ROT = int(os.environ.get('ROT','4'))
PF = int(os.environ.get('PF','0'))
WDF_ST = 88
LX, LW = 236, 240
GA, TID = 243, 252
ET = 20

def ka_prologue(p, st):
    p.label("ka_start")
    p("s_cmp_ge_u32 s2, 256")
    p("s_cbranch_scc1 A_exit")
    load_args(p)
    st.take(p,0)
    p("""v_lshrrev_b32 v2, 6, v0
    v_and_b32 v1, 63, v0
    v_readfirstlane_b32 s3, v2
    s_and_b32 s62, s2, 7
    s_lshr_b32 s63, s2, 3
    s_and_b32 s64, s62, 1
    s_lshl_b32 s64, s64, 3
    s_and_b32 s65, s63, 7
    s_add_u32 s64, s64, s65
    s_lshr_b32 s65, s62, 1
    s_lshl_b32 s65, s65, 2
    s_lshr_b32 s66, s63, 3
    s_add_u32 s65, s65, s66          ; s65 = ft (0..15)
    s_lshl_b32 s66, s64, 4
    s_add_u32 s66, s66, s65          ; s66 = widx
    s_and_b32 s77, s3, 3             ; s77 = wave & 3""")
    if ROT==8:
        p("""s_and_b32 s76, s65, 3
        s_lshl_b32 s76, s76, 1
        s_add_u32 s76, s76, s64""")
    elif ROT==4:
        p("""s_add_u32 s76, s65, s64
        s_and_b32 s76, s76, 3
        s_lshl_b32 s76, s76, 1""")

def gelu_tile(p, acc, tmp, dst, cC0, cC1, cONE):
    prs = range(4)
    g = lambda i: vr(acc+2*i,2); u = lambda i: vr(acc+8+2*i,2)
    t = lambda i: vr(tmp+2*i,2); q = lambda i: vr(tmp+8+2*i,2)
    for i in prs: p(f"v_pk_mul_f32 {t(i)}, {g(i)}, {g(i)}")
    for i in prs: p(f"v_pk_fma_f32 {t(i)}, {t(i)}, {vr(cC1,2)}, {vr(cC0,2)}")
    for i in prs: p(f"v_pk_mul_f32 {t(i)}, {t(i)}, {g(i)}")
    for i in range(8): p(f"v_exp_f32 v{tmp+i}, v{tmp+i}")
    for i in prs: p(f"v_pk_mul_f32 {q(i)}, {g(i)}, {u(i)}")
    for i in prs: p(f"v_pk_add_f32 {t(i)}, {t(i)}, {vr(cONE,2)}")
    for i in range(8): p(f"v_rcp_f32 v{tmp+i}, v{tmp+i}")
    for i in prs: p(f"v_pk_mul_f32 {q(i)}, {q(i)}, {t(i)}")
    for i in prs: p(f"v_cvt_pk_bf16_f32 v{dst+i}, v{tmp+8+2*i}, v{tmp+9+2*i}")

def loader_setup(p):
    p("""v_lshrrev_b32 v2, 3, v1
    v_and_b32 v3, 7, v1              ; pos
    v_lshrrev_b32 v4, 4, v1          ; l>>4
    s_lshl_b32 s68, s64, 7           ; rb*128
    s_lshl_b32 s69, s77, 5
    s_add_u32 s68, s68, s69
    v_add_u32 v2, s68, v2
    v_lshlrev_b32 v2, 10, v2
    v_xor_b32 v5, v4, v3""")
    p(f"v_lshl_add_u32 v{LX}, v5, 4, v2")
    p(f"v_xor_b32 v{LX+1}, 64, v{LX}")
    p(f"v_add_u32 v{LX+1}, 8192, v{LX+1}")
    p(f"v_add_u32 v{LX+2}, 16384, v{LX}")
    p(f"v_add_u32 v{LX+3}, 16384, v{LX+1}")
    p("""s_mul_i32 s68, s77, 192
    s_mul_i32 s69, s65, 192          ; f0*2 bytes
    s_mov_b32 s70, 43691
    v_add_u32 v2, s68, v1""")
    for j in range(3):
        p(f"""v_add_u32 v5, {64*j}, v2
        v_mul_u32_u24 v6, s70, v5
        v_lshrrev_b32 v6, 19, v6         ; k = p/12
        v_mul_u32_u24 v6, {2752-192}, v6
        v_lshl_add_u32 v6, v5, 4, v6
        v_add_u32 v{LW+j}, s69, v6""")
    p(f"""s_lshl_b32 s72, s77, 12
    s_mul_i32 s73, s77, 3072
    s_add_u32 s73, s73, {WGO}""")

def loader_srds(p):
    srd(p, 4, P_U, 2048*1024)
    srd(p, 8, P_WG, 512*2752)
    srd(p, 12, P_WU, 512*2752)

def ka_issue(p, s):
    slot=SB[s%3]
    p(f"s_add_u32 s74, s76, {s}")
    p(f"s_and_b32 s74, s74, 7")
    p(f"s_mul_i32 s75, s74, {64*2752}")
    p(f"s_lshl_b32 s74, s74, 7")
    for j in range(4):
        p(f"s_add_u32 m0, s72, {slot+XO+j*1024}")
        p.v(f"buffer_load_dwordx4 v{LX+j}, s[4:7], s74 offen lds", ("st",s))
    for j in range(3):
        p(f"s_add_u32 m0, s73, {slot+j*1024}")
        p.v(f"buffer_load_dwordx4 v{LW+j}, s[8:11], s75 offen lds", ("st",s))
        p(f"s_add_u32 m0, s73, {slot+j*1024+WUO-WGO}")
        p.v(f"buffer_load_dwordx4 v{LW+j}, s[12:15], s75 offen lds", ("st",s))

def x_addr(p, XA):
    p(f"""v_and_b32 v2, 31, v1             ; mm
    v_lshrrev_b32 v3, 5, v1          ; h
    v_bfe_u32 v4, v1, 1, 3           ; (mm>>1)&7
    s_lshl_b32 s69, s67, 13
    s_add_u32 s69, s69, {RING}
    v_lshlrev_b32 v5, 7, v2
    v_add_u32 v5, s69, v5""")
    for ks in range(4):
        p(f"v_or_b32 v6, {2*ks}, v3")
        p(f"v_xor_b32 v6, v6, v4")
        p(f"v_lshl_add_u32 v{XA+ks}, v6, 4, v5")
        for s in (1,2):
            p(f"v_add_u32 v{XA+4*s+ks}, {s*SLOT}, v{XA+ks}")

def ka_front(p, st):
    loader_srds(p)
    ka_issue(p, 0)
    p("""s_and_b32 s67, s3, 1
    s_lshr_b32 s68, s3, 1""")

def ka_compute(p, st, SC=""):
    ACC=16; FR=112; XA=152; WA=164; TMP=168; CST=184; OUT=192
    acc = lambda t,mt: ACC+(t*2+mt)*16
    fa = lambda s,t: FR+20*s+4*t
    fb = lambda s,mt: FR+20*s+12+4*mt
    p.vm=[("st",0)]*10
    x_addr(p, XA)
    p(f"""v_bfe_u32 v6, v1, 4, 1
    v_mul_u32_u24 v6, {WUO-WGO}, v6
    v_lshlrev_b32 v7, 3, v3          ; 8h
    v_bfe_u32 v8, v1, 2, 2
    v_add_u32 v7, v7, v8
    v_mul_u32_u24 v7, 192, v7
    v_add_u32 v6, v6, v7
    v_and_b32 v7, 3, v1
    v_lshl_add_u32 v6, v7, 3, v6
    s_mul_i32 s69, s68, 96
    s_add_u32 s69, s69, {RING+WGO}
    v_add_u32 v{WA}, s69, v6
    v_add_u32 v{WA+1}, {SLOT}, v{WA}
    v_add_u32 v{WA+2}, {2*SLOT}, v{WA}""")
    c0 = -2*0.7978845608028654*LOG2E
    p(f"""v_mov_b32 v{CST}, {f32(c0)}
    v_mov_b32 v{CST+1}, {f32(c0)}
    v_mov_b32 v{CST+2}, {f32(c0*0.044715)}
    v_mov_b32 v{CST+3}, {f32(c0*0.044715)}
    v_mov_b32 v{CST+4}, 1.0
    v_mov_b32 v{CST+5}, 1.0""")
    ka_issue(p, 1)
    srd(p, 16, P_WS, H_BYTES, H_OFF)
    p("""s_lshl_b32 s70, s64, 2
    s_lshl_b32 s71, s67, 1
    s_add_u32 s70, s70, s71
    s_mul_i32 s70, s70, 86
    s_mul_i32 s71, s65, 6
    s_mul_i32 s72, s68, 3
    s_add_u32 s71, s71, s72
    s_add_u32 s70, s70, s71
    s_lshl_b32 s70, s70, 10
    v_lshlrev_b32 v9, 4, v1""")
    def reads(s, ks, fs):
        slot = s%3
        L=[]
        for mt in range(2):
            L.append(f"ds_read_b128 {vr(fb(fs,mt),4)}, v{XA+4*slot+ks} offset:{XO+4096*mt}")
        for t in range(3):
            for half in range(2):
                L.append(f"ds_read_b64_tr_b16 {vr(fa(fs,t)+2*half,2)}, v{WA+slot} offset:{ks*3072+half*768+t*32}")
        return [L[0],L[2],L[3],L[1],L[4],L[5],L[6],L[7]]
    p.wait(vm=[("st",0)])
    st.take(p,1)
    p("s_barrier")
    st.take(p,2)
    for x in reads(0,0,0): p.d(x,"f")
    n=0
    for s in range(NST):
        for ks in range(4):
            fs = n%2
            p.wait(lg="all", vm=("all" if (s==0 and ks==3) else None))
            nxt=None
            if ks==3:
                if s<NST-1:
                    p("s_barrier"); nxt=reads(s+1,0,1-fs)
                    if s==3: st.take(p,3)
            else: nxt=reads(s,ks+1,1-fs)
            nxt = nxt or []
            k=0
            order=[(0,0),(0,1),(1,0),(1,1),(2,0),(2,1)]
            per=[2,2,2,1,1,0]
            for j,(t,mt) in enumerate(order):
                c = "0" if n==0 else vr(acc(t,mt),16)
                p(f"v_mfma_f32_32x32x16_bf16 {vr(acc(t,mt),16)}, {vr(fa(fs,t),4)}, {vr(fb(fs,mt),4)}, {c}")
                for _ in range(per[j]):
                    if k<len(nxt): p.d(nxt[k],"f"); k+=1
            n+=1
    st.take(p,4)
    for t in range(3):
        if t==2:
            p("s_cmp_ge_u32 s71, 84")
            p("s_cbranch_scc1 A_compute_done")
        for mt in range(2):
            o = OUT+4*((t*2+mt)%4)
            gelu_tile(p, acc(t,mt), TMP, o, CST, CST+2, CST+4)
            p(f"s_add_u32 s72, s70, {(mt*86+t)*1024}")
            p(f"buffer_store_dwordx4 {vr(o,4)}, v9, s[16:19], s72 offen{SC}")
    p.label("A_compute_done")
    st.take(p,5)

def ka_gate(p, st, SC=""):
    GW=16; XA=152; FB=48; AC=80
    gwreg=lambda s,ks: GW+16*(s%2)+4*ks
    p.label("A_gate")
    p.vm=[("st",0)]*10
    x_addr(p, XA)
    srd(p, 16, P_GW, 1024)
    p("v_lshlrev_b32 v14, 4, v3")
    def gwload(s):
        p(f"s_add_u32 s75, s76, {s}")
        p("s_and_b32 s75, s75, 7")
        p("s_lshl_b32 s75, s75, 7")
        for ks in range(4):
            p.v(f"buffer_load_dwordx4 {vr(gwreg(s,ks),4)}, v14, s[16:19], s75 offen offset:{32*ks}",("gw",s))
    ka_issue(p, 1)
    gwload(0)
    for s in range(NST):
        slot=s%3
        if s<2: p.wait(vm=[("st",s)])
        p("s_barrier")
        for ks in range(4):
            for mt in range(2):
                p.d(f"ds_read_b128 {vr(FB+(ks*2+mt)*4,4)}, v{XA+4*slot+ks} offset:{XO+4096*mt}","f")
        if s<NST-1: gwload(s+1)
        p.wait(vm=[("gw",s)], lg="all")
        for ks in range(4):
            for mt in range(2):
                c = "0" if (s==0 and ks==0) else vr(AC+16*mt,16)
                p(f"v_mfma_f32_32x32x16_bf16 {vr(AC+16*mt,16)}, {vr(gwreg(s,ks),4)}, {vr(FB+(ks*2+mt)*4,4)}, {c}")
    srd(p, 16, P_WS, 8192, G_OFF)
    p(f"""v_lshlrev_b32 v11, 2, v2
    s_lshl_b32 s70, s64, 9
    s_lshl_b32 s71, s67, 8
    s_add_u32 s70, s70, s71""")
    for mt in range(2):
        a=AC+16*mt
        p(f"""v_cvt_pk_bf16_f32 v12, v{a}, v{a}
        v_and_b32 v12, 0xffff0000, v12
        v_mul_f32 v12, {f32(-LOG2E)}, v12
        v_exp_f32 v12, v12
        v_add_f32 v12, 1.0, v12
        v_rcp_f32 v12, v12
        v_cvt_pk_bf16_f32 v12, v12, v12
        v_and_b32 v{6+mt}, 0xffff0000, v12
        buffer_store_dword v{6+mt}, v11, s[16:19], s70 offen offset:{128*mt}{SC}""")
    st.take(p,5)

def ka_ut(p, s, SC=""):
    u=p.uid()
    TR=144
    p(f"""s_lshr_b32 s20, s65, 2
    s_cmp_lg_u32 s20, {s}
    s_cbranch_scc1 A_nout{u}""")
    p(f"""v_lshrrev_b32 v44, 4, v1
    v_bfe_u32 v45, v1, 2, 2
    v_bfe_u32 v46, v1, 1, 1
    v_lshlrev_b32 v44, 4, v44
    v_lshl_add_u32 v44, v46, 3, v44
    v_add_u32 v44, v44, v45
    v_bfe_u32 v45, v44, 1, 3
    v_lshlrev_b32 v44, 7, v44
    v_lshl_add_u32 v44, v45, 4, v44
    v_and_b32 v45, 1, v1
    v_lshl_add_u32 v44, v45, 3, v44
    s_and_b32 s20, s77, 1
    s_lshl_b32 s21, s20, 13
    s_add_u32 s21, s21, {SB[s%3]+XO}
    v_add_u32 v44, s21, v44
    s_lshr_b32 s21, s77, 1
    s_lshl_b32 s21, s21, 6
    v_xor_b32 v44, s21, v44""")
    for cg in range(4):
        for half in range(2):
            p(f"v_xor_b32 v{186+(2*cg+half)%4}, {(cg<<4)^(half*32)}, v44")
            p(f"ds_read_b64_tr_b16 {vr(TR+4*cg+2*half,2)}, v{186+(2*cg+half)%4} offset:{half*512}")
    srd(p, 28, P_WS, 512*4096, UT_OFF)
    p(f"""v_and_b32 v45, 7, v1
    v_lshlrev_b32 v45, 12, v45
    v_lshrrev_b32 v46, 3, v1
    v_lshl_add_u32 v45, v46, 4, v45
    s_lshl_b32 s20, s20, 7
    s_lshl_b32 s21, s21, 11
    s_add_u32 s20, s20, s21
    s_lshl_b32 s21, s64, 8
    s_add_u32 s20, s20, s21
    s_add_u32 s21, s76, {s}
    s_and_b32 s21, s21, 7
    s_lshl_b32 s21, s21, 18
    s_add_u32 s20, s20, s21
    s_waitcnt lgkmcnt(0)""")
    for cg in range(4):
        p(f"buffer_store_dwordx4 {vr(TR+4*cg,4)}, v45, s[28:31], s20 offen{SC}")
        if cg<3: p(f"s_add_u32 s20, s20, {8*4096}")
    p.label(f"A_nout{u}")

def ka_expand(p, fused, ch):
    if not fused:
        srd(p, 28, P_WS, 512*KX_CH, KX_OFF)
        p(f"s_mul_i32 s20, s66, {2*KX_CH}")
    p(f"v_lshlrev_b32 v18, 4, v{TID}")
    def emit(ch,Q,Pp):
        if fused:
            p.d(f"ds_write_b128 v18, {vr(Q,4)} offset:{KXL+ch*KX_CH}","kx")
            p.d(f"ds_write_b128 v18, {vr(Pp,4)} offset:{KXL+ch*KX_CH+KXP_OFF}","kx")
            return
        p(f"s_add_u32 s21, s20, {ch*KX_CH}")
        p.v(f"buffer_store_dwordx4 {vr(Q,4)}, v18, s[28:31], s21 offen","kx")
        p(f"s_add_u32 s21, s20, {ch*KX_CH+KXP_OFF}")
        p.v(f"buffer_store_dwordx4 {vr(Pp,4)}, v18, s[28:31], s21 offen","kx")
    expand_run(p, GA, TID, ET, emit, (ch,))
    if ch==0:
        if fused: p.wait(lg='all')
        return
    u=p.uid()
    p(f"""v_lshrrev_b32 v19, 2, v{TID}
    v_mul_u32_u24 v19, {KXP_OFF}, v19
    v_and_b32 v{ET}, 3, v{TID}
    v_lshl_add_u32 v19, v{ET}, 4, v19
    v_add_u32 v19, 4096, v19
    v_mov_b32 v{ET}, 0
    v_mov_b32 v{ET+1}, 0
    v_mov_b32 v{ET+2}, 0
    v_mov_b32 v{ET+3}, 0
    v_cmp_gt_u32 vcc, 16, v{TID}
    s_and_saveexec_b64 s[22:23], vcc
    s_cbranch_execz A_notail{u}""")
    if fused: p(f"ds_write_b128 v19, {vr(ET,4)} offset:{KXL}")
    else: p(f"buffer_store_dwordx4 {vr(ET,4)}, v19, s[28:31], s20 offen")
    p.label(f"A_notail{u}")
    p("s_mov_b64 exec, s[22:23]")
    if fused: p.wait(lg="all")

def ka_helper(p, st, fused=False, SC=""):
    p.label("A_helper")
    p.vm=["kp"]*5
    loader_srds(p)
    p(f"v_subrev_u32 v{TID}, 256, v0")
    expand_index(p, GA, TID, ET, KSC)
    p(f"s_mul_i32 s23, s77, {TBL}")
    def issue(s):
        u=p.uid()
        p("s_cmp_eq_u32 s65, 15")
        p(f"s_cbranch_scc1 A_noissue{u}")
        ka_issue(p, s)
        p.label(f"A_noissue{u}")
    kgen_compute(p, 23, None, st)
    st.take(p,2)
    for s in range(NST):
        if s>=2: p.wait(vm=[("st",s)])
        if s==4: st.take(p,4)
        p("s_barrier")
        if s+2<NST: issue(s+2)
        if s<2: ka_ut(p, s, SC)
        if s==2: st.take(p,3)
    ka_expand(p, fused, 0)
    ka_expand(p, fused, 1)
    st.take(p,5)

def ka_wdf(p, st, SC=""):
    p.label("A_wdf")
    p(f"""v_lshrrev_b32 v2, 4, v1
    v_and_b32 v3, 15, v1
    v_lshlrev_b32 v10, 10, v2
    v_lshl_add_u32 v10, v3, 4, v10
    s_lshl_b32 s68, s77, 8
    v_add_u32 v10, s68, v10
    s_mul_i32 s72, s77, 24576
    s_add_u32 s72, s72, {RING}
    s_lshl_b32 s68, s64, 14
    s_waitcnt lgkmcnt(0)""")
    srd(p, 4, P_WD, 1376*1024)
    for j in range(6):
        for k in range(4):
            p(f"s_add_u32 s74, s68, {j*16*16384+k*4096}")
            p(f"s_add_u32 m0, s72, {j*4096+k*1024}")
            p.v(f"buffer_load_dwordx4 v10, s[4:7], s74 offen lds",("u",j))
    p("""v_lshrrev_b32 v4, 5, v1
    v_bfe_u32 v5, v1, 2, 2
    v_lshl_add_u32 v4, v4, 2, v5
    v_lshlrev_b32 v4, 8, v4
    v_and_b32 v5, 1, v1
    v_lshl_add_u32 v4, v5, 5, v4
    v_bfe_u32 v5, v1, 4, 1
    v_lshl_add_u32 v4, v5, 4, v4
    v_bfe_u32 v5, v1, 1, 1
    v_lshl_add_u32 v4, v5, 3, v4
    v_add_u32 v4, s72, v4
    v_lshlrev_b32 v9, 4, v1""")
    srd(p, 8, P_WS, 16*WDF_ST*1024, WDF_OFF)
    p(f"""s_mul_i32 s70, s77, {4*WDF_ST}
    s_add_u32 s70, s70, s64
    s_lshl_b32 s70, s70, 10""")
    for j in range(6):
        if j==5:
            p("s_cmp_ge_u32 s64, 8")
            p("s_cbranch_scc1 A_wdf_done")
        p.wait(vm=[("u",j)])
        R=96+16*(j%2)
        for x in range(4):
            for half in range(2):
                p.d(f"ds_read_b64_tr_b16 {vr(R+4*x+2*half,2)}, v4 offset:{j*4096+half*2048+x*64}",("x",x))
        for x in range(4):
            p.wait(lg=[("x",x)])
            p(f"s_add_u32 s74, s70, {(x*WDF_ST+16*j)*1024}")
            p.v(f"buffer_store_dwordx4 {vr(R+4*x,4)}, v9, s[8:11], s74 offen{SC}","o")
    p.label("A_wdf_done")
    st.take(p,5)

def build_ka(stamps=False):
    st=Stamps(stamps)
    p=Prog()
    ka_prologue(p, st)
    if PF:
        p("s_lshl_b32 s29, s63, 3\ns_add_u32 s29, s29, s3\ns_and_b32 s29, s29, 31")
        code_prefetch(p, "ka_start", "ka_end", 29, tmp=226)
    loader_setup(p)
    kgen_loads(p)
    p("""s_waitcnt lgkmcnt(0)
    s_cmp_lt_u32 s3, 4
    s_cbranch_scc1 A_front""")
    kgen_issue(p)
    p("s_barrier")
    p("s_branch A_helper")
    p.label("A_front")
    p("s_barrier")
    p("""s_cmp_eq_u32 s65, 15
    s_cbranch_scc1 A_wdf""")
    ka_front(p, st)
    p("""s_add_u32 s20, s65, s68
    s_cmp_eq_u32 s20, 15
    s_cbranch_scc1 A_gate""")
    parts=[p]
    for fn in (ka_compute, ka_gate, ka_helper, ka_wdf):
        q=Prog(); st.on=stamps; fn(q, st); st.on=stamps
        q("s_waitcnt vmcnt(0)")
        st.take(q,6); st.flush(q,7,0)
        q("s_endpgm")
        parts.append(q)
    lines=sum((q.L for q in parts),[])+["A_exit:","    s_endpgm","ka_end:"]
    return kernel_text("ka_kernel", lines)
```

```python
from ka import *
LDS_B = 163840
UTL  = RING
UTW  = 4608
XCH  = UTL + 4*UTW
RED  = XCH + 4*4096
YS   = RED + 4*12288
YP   = 192
LFLAG = KXL + 2*KX_CH
assert LFLAG+64 <= RING and YS+64*YP <= LDS_B
NSTEP = 22

def kb_decode(p):
    p("""s_lshl_b32 s78, s62, 2
    s_lshr_b32 s79, s63, 3
    s_add_u32 s78, s78, s79
    s_and_b32 s79, s63, 7""")

def conv_setup(p):
    FA=4; GAa=8
    p(f"""v_lshlrev_b32 v2, 4, v1
    v_and_b32 v10, 15, v1            ; i / a
    v_lshrrev_b32 v11, 4, v1         ; q
    s_lshr_b32 s20, s77, 1
    s_and_b32 s21, s77, 1            ; half
    v_and_b32 v12, 1, v10
    v_mul_u32_u24 v12, {KXP_OFF}, v12
    v_lshrrev_b32 v13, 1, v10
    v_lshlrev_b32 v14, 2, v11
    v_sub_u32 v13, v14, v13
    v_lshl_add_u32 v12, v13, 2, v12
    s_mul_i32 s22, s20, {KX_CH}
    s_lshl_b32 s23, s21, 8
    s_sub_u32 s22, s22, s23
    s_add_u32 s22, s22, {KXL + 4*(1015-48-128)}
    v_add_u32 v{FA}, s22, v12""")
    for j in range(1,4): p(f"v_subrev_u32 v{FA+j}, {1024*j}, v{FA}")
    p(f"""s_mul_i32 s22, s77, {UTW}
    s_add_u32 s22, s22, {UTL}
    v_add_u32 v9, s22, v2
    s_sub_u32 s22, s22, s23
    s_add_u32 s22, s22, {448-192}
    v_lshlrev_b32 v12, 5, v10
    v_lshl_add_u32 v12, v11, 4, v12
    v_add_u32 v{GAa}, s22, v12""")

def conv_ut_load(p, SC):
    srd(p, 4, P_WS, 512*4096, UT_OFF)
    p(f"""s_lshl_b32 s22, s66, 1
    s_add_u32 s22, s22, s20
    s_lshl_b32 s22, s22, 12""")
    for k in range(4):
        p.v(f"buffer_load_dwordx4 {vr(16+4*k,4)}, v2, s[4:7], s22 offen offset:{1024*k}{SC}","ut")

def conv_ut_stage(p):
    p("""v_mov_b32 v32, 0
    v_mov_b32 v33, 0
    v_mov_b32 v34, 0
    v_mov_b32 v35, 0""")
    p.d("ds_write_b128 v9, v[32:35]","z")
    p.wait(vm="ut")
    for k in range(4):
        p.d(f"ds_write_b128 v9, {vr(16+4*k,4)} offset:{480+1024*k}","z")

def conv_main(p, st, mid=None):
    FA=4; GAa=8; ACC=16; FR=48
    F=lambda b,i: FR+64*b+4*i
    G=lambda b,j: FR+64*b+32+4*j
    def reads(k):
        b=k%2; L=[]
        for x in range(8):
            o=(3-k)*16+(128 if x%2==0 else 0)
            L.append((f"ds_read2_b32 {vr(F(b,x),2)}, v{FA+x//2} offset0:{o} offset1:{o+1}",("F",k,x)))
            L.append((f"ds_read2_b32 {vr(F(b,x)+2,2)}, v{FA+x//2} offset0:{o+2} offset1:{o+3}",("F",k,x)))
            L.append((f"ds_read_b128 {vr(G(b,x),4)}, v{GAa} offset:{(3-k)*64+512*x}",("G",k,x)))
        return L
    for ins,tag in reads(0): p.d(ins,tag)
    for k in range(4):
        b=k%2
        nxt = reads(k+1) if k<3 else []
        pairs=sorted([(i,j) for i in range(8) for j in range(8) if i+j<8], key=lambda ij:(max(ij),ij))
        seen=set(); have=-1; z=0
        for n,(i,j) in enumerate(pairs):
            m=max(i,j)
            if m>have:
                p.wait(lg=[("G",k,m)]); have=m
            t=i+j
            c = "0" if (k==0 and t not in seen) else vr(ACC+4*t,4)
            seen.add(t)
            p(f"v_mfma_f32_16x16x32_bf16 {vr(ACC+4*t,4)}, {vr(F(b,i),4)}, {vr(G(b,j),4)}, {c}")
            if n>=8 and z<len(nxt) :
                p.d(*nxt[z]); z+=1
        while z<len(nxt): p.d(*nxt[z]); z+=1
        if mid: mid(k)

def conv_finish(p, st, SC):
    ACC=16
    u=p.uid()
    p(f"""s_cmp_eq_u32 s21, 0
    s_cbranch_scc1 B_noswap{u}""")
    for k in range(16): p(f"v_swap_b32 v{ACC+k}, v{ACC+16+k}")
    p.label(f"B_noswap{u}")
    p(f"""s_lshl_b32 s22, s77, 12
    s_xor_b32 s23, s22, 4096
    s_add_u32 s22, s22, {XCH}
    s_add_u32 s23, s23, {XCH}
    v_add_u32 v10, s22, v2
    v_add_u32 v11, s23, v2
    s_lshl_b32 s22, s77, 2
    s_add_u32 s22, s22, {LFLAG}
    v_mov_b32 v12, s22
    v_xor_b32 v13, 4, v12
    v_mov_b32 v14, 1""")
    for k in range(4): p(f"ds_write_b128 v10, {vr(ACC+16+4*k,4)} offset:{1024*k}")
    p("s_waitcnt lgkmcnt(0)")
    p("ds_write_b32 v12, v14")
    srd(p, 4, P_WS, 512*4096, YT_OFF)
    p(f"""v_and_b32 v15, 15, v1
    v_lshlrev_b32 v15, 5, v15
    v_bfe_u32 v48, v1, 4, 1
    v_lshl_add_u32 v15, v48, 9, v15
    v_lshrrev_b32 v48, 5, v1
    v_lshl_add_u32 v15, v48, 4, v15
    s_lshl_b32 s22, s66, 1
    s_add_u32 s22, s22, s20
    s_lshl_b32 s22, s22, 12
    s_lshl_b32 s23, s21, 11
    s_add_u32 s22, s22, s23""")
    p.label(f"B_pair{u}")
    p(f"""ds_read_b32 v48, v13
    s_waitcnt lgkmcnt(0)
    v_readfirstlane_b32 s23, v48
    s_cmp_eq_u32 s23, 0
    s_cbranch_scc1 B_pair{u}""")
    for k in range(4): p(f"ds_read_b128 {vr(ACC+16+4*k,4)}, v11 offset:{1024*k}")
    p("s_waitcnt lgkmcnt(0)")
    for k in range(8): p(f"v_pk_add_f32 {vr(ACC+2*k,2)}, {vr(ACC+2*k,2)}, {vr(ACC+16+2*k,2)}")
    for t in range(4):
        for z in range(2): p(f"v_cvt_pk_bf16_f32 v{48+2*t+z}, v{ACC+4*t+2*z}, v{ACC+4*t+2*z+1}")
    for pr in range(2):
        for z in range(2): p(f"v_permlane16_swap_b32 v{48+4*pr+z}, v{48+4*pr+2+z}")
    for pr in range(2):
        p(f"buffer_store_dwordx4 {vr(48+4*pr,4)}, v15, s[4:7], s22 offen offset:{1024*pr}{SC}")

def lds_last(p, lbl_skip, cnt):
    p(f"""v_mov_b32 v12, {LFLAG+16}
    v_mov_b32 v14, 1
    s_mov_b64 s[22:23], exec
    s_mov_b64 exec, 1
    ds_add_rtn_u32 v13, v12, v14
    s_waitcnt lgkmcnt(0)
    v_readfirstlane_b32 s24, v13
    s_mov_b64 exec, s[22:23]
    s_cmp_lg_u32 s24, {cnt-1}
    s_cbranch_scc1 {lbl_skip}""")

class Pool:
    def __init__(self, base, n): self.free=[base+8*i for i in range(n)]
    def get(self): return self.free.pop(0)
    def put(self, r): self.free.append(r)

def gemm2_setup(p):
    srd(p, 4, P_WS, H_BYTES, H_OFF)
    srd(p, 8, P_WS, WDF_BYTES, WDF_OFF)
    p(f"""v_lshlrev_b32 v6, 4, v1
    s_and_b32 s20, s77, 1
    s_lshl_b32 s21, s78, 1
    s_add_u32 s21, s21, s20
    s_mul_i32 s22, s21, {86*1024}
    v_add_u32 v2, s22, v6
    s_xor_b32 s21, s21, 1
    s_mul_i32 s22, s21, {86*1024}
    v_add_u32 v3, s22, v6
    s_lshr_b32 s20, s77, 1
    s_lshl_b32 s21, s79, 1
    s_add_u32 s21, s21, s20
    s_mul_i32 s22, s21, {WDF_ST*1024}
    v_add_u32 v4, s22, v6
    s_xor_b32 s21, s21, 1
    s_mul_i32 s22, s21, {WDF_ST*1024}
    v_add_u32 v5, s22, v6""")
    p(f"""s_mul_i32 s24, s79, 3
    s_lshr_b32 s25, s63, 3
    s_add_u32 s24, s24, s25
    s_cmp_ge_u32 s24, {NSTEP}
    s_cselect_b32 s25, {NSTEP}, 0
    s_sub_u32 s24, s24, s25
    s_lshl_b32 s24, s24, 2
    s_add_u32 s24, s24, s77
    s_lshl_b32 s24, s24, 10
    s_mov_b32 s25, s24
    s_lshl_b32 s26, s77, 10""")

def adv(p, r):
    p(f"""s_add_u32 s{r}, s{r}, 4096
    s_cmp_ge_u32 s{r}, {88*1024}
    s_cselect_b32 s{r}, s26, s{r}""")

class Gemm2:
    ACC=16
    def __init__(self, p, SC):
        self.p=p; self.SC=SC; self.pool=Pool(80,22); self.W={}; self.H={}; self.nw=0; self.nh=0
    def ldw(self):
        p=self.p; s=self.nw; r=self.pool.get(); self.W[s]=r; self.nw+=1
        p.v(f"buffer_load_dwordx4 {vr(r,4)}, v4, s[8:11], s24 offen{self.SC}",("w",s))
        p.v(f"buffer_load_dwordx4 {vr(r+4,4)}, v5, s[8:11], s24 offen{self.SC}",("w",s))
        adv(p,24)
    def ldh(self):
        p=self.p; s=self.nh; r=self.pool.get(); self.H[s]=r; self.nh+=1
        p(f"s_min_u32 s27, s25, {85*1024}")
        p.v(f"buffer_load_dwordx4 {vr(r,4)}, v2, s[4:7], s27 offen{self.SC}",("h",s))
        p.v(f"buffer_load_dwordx4 {vr(r+4,4)}, v3, s[4:7], s27 offen{self.SC}",("h",s))
        adv(p,25)
    def run(self, late=None):
        p=self.p
        for s in range(NSTEP):
            p.wait(vm=[("w",s),("h",s)])
            w,h=self.W[s],self.H[s]
            for dz in range(2):
                for mz in range(2):
                    a=self.ACC+16*(2*dz+mz)
                    p(f"v_mfma_f32_32x32x16_bf16 {vr(a,16)}, {vr(w+4*dz,4)}, {vr(h+4*mz,4)}, {'0' if s==0 else vr(a,16)}")
            self.pool.put(w); self.pool.put(h)
            for _ in range(2):
                if self.nw<NSTEP and (self.nw<=self.nh or self.nh>=NSTEP): self.ldw()
                elif self.nh<NSTEP: self.ldh()
            if late: late(s)

def gemm2_epi_loads(p, X):
    srd(p, 12, P_U, 2048*1024)
    srd(p, 16, P_DSK, 1024)
    srd(p, 28, P_WS, 8192, G_OFF)
    p(f"""v_and_b32 v8, 31, v1
    v_lshrrev_b32 v9, 5, v1
    s_lshl_b32 s20, s78, 1
    s_and_b32 s21, s77, 1
    s_add_u32 s20, s20, s21
    s_lshl_b32 s20, s20, 5
    v_add_u32 v10, s20, v8
    s_lshl_b32 s21, s79, 1
    s_lshr_b32 s22, s77, 1
    s_add_u32 s21, s21, s22
    s_lshl_b32 s21, s21, 6
    v_lshl_add_u32 v11, v9, 5, s21
    v_lshl_add_u32 v7, v10, 10, v11
    v_lshlrev_b32 v10, 2, v10""")
    for k in range(2):
        p.v(f"buffer_load_dwordx4 {vr(X+4*k,4)}, v7, s[12:15], 0 offen offset:{16*k}","e")
        p.v(f"buffer_load_dwordx4 {vr(X+8+4*k,4)}, v11, s[16:19], 0 offen offset:{16*k}","e")

def gemm2_finish(p, st, X, poll_y, SC):
    ACC=16
    T=80 if X>=160 else 176
    p(f"v_lshlrev_b32 v6, 4, v1")
    for z in range(1,4):
        p(f"""s_xor_b32 s20, s77, {z}
        s_mul_i32 s20, s20, 12288
        s_add_u32 s20, s20, {RED+(z-1)*4096}
        v_add_u32 v{11+z}, s20, v6""")
    for z in range(1,4):
        for k in range(4):
            p.d(f"ds_write_b128 v{11+z}, {vr(ACC+16*z+4*k,4)} offset:{1024*k}","pw")
    st.take(p,3)
    poll_y(p)
    st.take(p,4)
    p.wait(lg="all")
    srd(p, 12, P_WS, 512*4096, YT_OFF)
    p(f"""v_lshrrev_b32 v12, 3, v1
    v_and_b32 v13, 7, v1
    v_lshlrev_b32 v14, 12, v12
    v_lshl_add_u32 v14, v13, 4, v14
    s_lshl_b32 s20, s79, 6
    s_lshl_b32 s21, s77, 4
    s_add_u32 s20, s20, s21
    s_lshl_b32 s20, s20, 12
    s_lshl_b32 s21, s78, 7
    s_add_u32 s20, s20, s21
    s_add_u32 s21, s20, {8*4096}""")
    p.v(f"buffer_load_dwordx4 v[32:35], v14, s[12:15], s20 offen{SC}","y")
    p.v(f"buffer_load_dwordx4 v[36:39], v14, s[12:15], s21 offen{SC}","y")
    p.v(f"buffer_load_dword v{X+16}, v10, s[28:31], 0 offen{SC}","y")
    p(f"""v_mul_u32_u24 v12, {YP}, v12
    v_lshl_add_u32 v12, v13, 4, v12
    s_mul_i32 s20, s77, {16*YP}
    s_add_u32 s20, s20, {YS}
    v_add_u32 v12, s20, v12""")
    p(f"""v_bfe_u32 v13, v1, 2, 2
    v_lshl_add_u32 v13, v9, 4, v13
    v_mul_u32_u24 v13, {YP}, v13
    v_bfe_u32 v14, v1, 4, 1
    v_lshl_add_u32 v13, v14, 5, v13
    v_and_b32 v14, 3, v1
    v_lshl_add_u32 v13, v14, 3, v13
    s_lshr_b32 s20, s77, 1
    s_mul_i32 s20, s20, {32*YP}
    s_and_b32 s21, s77, 1
    s_lshl_b32 s21, s21, 6
    s_add_u32 s20, s20, s21
    s_add_u32 s20, s20, {YS}
    v_add_u32 v13, s20, v13
    s_mul_i32 s20, s77, 12288
    s_add_u32 s20, s20, {RED}
    v_add_u32 v14, s20, v6""")
    srd(p, 16, P_OUT, 2048*1024)
    p.wait(vm="all")
    p.d(f"ds_write_b128 v12, v[32:35]","y")
    p.d(f"ds_write_b128 v12, v[36:39] offset:{8*YP}","y")
    p.wait(lg="all")
    p("s_barrier")
    st.take(p,5)
    for j in range(4): p.d(f"ds_read_b64_tr_b16 {vr(40+2*j,2)}, v13 offset:{4*j*YP}","yt")
    for z in range(3):
        for k in range(4):
            p.d(f"ds_read_b128 {vr(T+16*z+4*k,4)}, v14 offset:{4096*z+1024*k}",("r",z))
    A=48; U=T+48; Dd=T+64
    for k in range(8):
        p(f"v_lshlrev_b32 v{U+2*k}, 16, v{X+k}")
        p(f"v_and_b32 v{U+2*k+1}, 0xffff0000, v{X+k}")
        p(f"v_lshlrev_b32 v{Dd+2*k}, 16, v{X+8+k}")
        p(f"v_and_b32 v{Dd+2*k+1}, 0xffff0000, v{X+8+k}")
    p(f"v_mov_b32 v{X+17}, v{X+16}")
    p(f"v_sub_f32 v{X+18}, 1.0, v{X+16}")
    p(f"v_sub_f32 v{X+19}, 1.0, v{X+16}")
    p.wait(lg="yt")
    for k in range(8):
        p(f"v_lshlrev_b32 v{A+2*k}, 16, v{40+k}")
        p(f"v_and_b32 v{A+2*k+1}, 0xffff0000, v{40+k}")
    for k in range(8): p(f"v_pk_fma_f32 {vr(A+2*k,2)}, {vr(U+2*k,2)}, {vr(Dd+2*k,2)}, {vr(A+2*k,2)}")
    for k in range(8): p(f"v_pk_mul_f32 {vr(A+2*k,2)}, {vr(A+2*k,2)}, {vr(X+16,2)}")
    for z in range(3):
        p.wait(lg=[("r",z)])
        for k in range(8): p(f"v_pk_add_f32 {vr(ACC+2*k,2)}, {vr(ACC+2*k,2)}, {vr(T+16*z+2*k,2)}")
    for k in range(8): p(f"v_pk_fma_f32 {vr(A+2*k,2)}, {vr(ACC+2*k,2)}, {vr(X+18,2)}, {vr(A+2*k,2)}")
    for k in range(8): p(f"v_cvt_pk_bf16_f32 v{32+k}, v{A+2*k}, v{A+2*k+1}")
    for k in range(2):
        p(f"buffer_store_dwordx4 {vr(32+4*k,4)}, v7, s[16:19], 0 offen offset:{16*k}")

def build_kb(stamps=False):
    st=Stamps(stamps)
    p=Prog()
    p("s_cmp_ge_u32 s2, 256")
    p("s_cbranch_scc1 B_exit")
    load_args(p)
    st.take(p,0)
    p("""v_lshrrev_b32 v2, 6, v0
    v_and_b32 v1, 63, v0
    v_readfirstlane_b32 s3, v2
    s_and_b32 s62, s2, 7
    s_lshr_b32 s63, s2, 3
    s_mov_b32 s66, s2
    s_and_b32 s77, s3, 3""")
    kb_decode(p)
    p("""s_cmp_lt_u32 s3, 4
    s_cbranch_scc1 B_conv""")
    p("s_waitcnt lgkmcnt(0)")
    gemm2_setup(p)
    p("s_barrier")
    g=Gemm2(p,"")
    for s in range(11): g.ldw(); g.ldh()
    p("s_barrier")
    st.take(p,1)
    X=[None]
    def late(s):
        if s==NSTEP-4:
            pass
    g.run()
    st.take(p,2)
    Xr=160
    gemm2_epi_loads(p, Xr)
    def poll_y(p):
        u=p.uid()
        p(f"""s_lshl_b32 s20, s79, 5
        v_mov_b32 v12, s20""")
        p.label(f"B_poll{u}")
        p(f"""global_load_dword v13, v12, s[{P_DBG}:{P_DBG+1}] sc1
        s_waitcnt vmcnt(0)
        v_readfirstlane_b32 s21, v13
        s_cmp_lt_u32 s21, 32
        s_cbranch_scc0 B_polled{u}
        s_sleep 2
        s_branch B_poll{u}""")
        p.label(f"B_polled{u}")
        p.vm.clear()
    gemm2_finish(p, st, Xr, poll_y, " sc1")
    p("s_waitcnt vmcnt(0)")
    st.take(p,6); st.flush(p,7,0x20000)
    p("s_endpgm")
    q=Prog()
    q.label("B_conv")
    conv_setup(q)
    q("s_waitcnt lgkmcnt(0)")
    conv_ut_load(q, "")
    srd(q, 8, P_WS, 512*KX_CH, KX_OFF)
    q(f"""s_mul_i32 s24, s66, {2*KX_CH}
    s_lshl_b32 s25, s77, 10
    s_add_u32 s24, s24, s25
    s_add_u32 s25, s25, {KXL}""")
    for k in range(5):
        if k==4:
            q("s_cmp_lg_u32 s77, 0"); q("s_cbranch_scc1 B_kxdone")
            q("s_mov_b64 exec, 0xffff")
        q(f"s_add_u32 m0, s25, {4096*k}")
        q(f"s_add_u32 s22, s24, {4096*k}")
        q.v(f"buffer_load_dwordx4 v2, s[8:11], s22 offen lds","kx")
    q("s_mov_b64 exec, -1")
    q.label("B_kxdone")
    q("s_barrier")
    q(f"""v_mov_b32 v12, {LFLAG}
    v_mov_b32 v32, 0
    v_mov_b32 v33, 0""")
    q.d("ds_write_b64 v12, v[32:33]","z"); q.d("ds_write_b64 v12, v[32:33] offset:8","z"); q.d("ds_write_b64 v12, v[32:33] offset:16","z")
    q.vm=["ut"]
    conv_ut_stage(q)
    q.wait(vm="all", lg="all")
    q("s_barrier")
    st.take(q,1)
    conv_main(q, st)
    st.take(q,2)
    conv_finish(q, st, " sc1")
    st.take(q,3)
    q("s_waitcnt vmcnt(0)")
    st.take(q,4)
    lds_last(q, "B_conv_end", 4)
    q(f"""s_lshr_b32 s20, s66, 5
    s_lshl_b32 s20, s20, 5
    v_mov_b32 v12, s20
    v_mov_b32 v13, 1
    s_mov_b64 exec, 1
    global_atomic_add v12, v13, s[{P_DBG}:{P_DBG+1}] sc1
    s_mov_b64 exec, -1""")
    q.label("B_conv_end")
    st.take(q,5); st.take(q,6); st.flush(q,7,0x20000)
    lines=p.L+q.L+["B_exit:","    s_endpgm"]
    return kernel_text("kb_kernel", lines)
```

```python
from common import *
import struct
def f32(x): return "0x%08x"%struct.unpack("<I",struct.pack("<f",x))[0]
LOG2E = 1.4426950408889634
L_HI = struct.unpack("<f",struct.pack("<f",LOG2E))[0]
L_LO = LOG2E - L_HI
ROWP = 272
TBL  = 16*ROWP
PART_BYTES = 16*48*4

def cmul(p, d, x, s, t):
    return [f"v_pk_mul_f32 {vr(t,2)}, {vr(x,2)}, {vr(s,2)} op_sel:[0,0] op_sel_hi:[1,0]",
            f"v_pk_fma_f32 {vr(d,2)}, {vr(x,2)}, {vr(s,2)}, {vr(t,2)} op_sel:[1,1,0] op_sel_hi:[0,1,1] neg_lo:[1,0,0]"]

def cmul_batch(p, items):
    A=[cmul(p,d,x,s,d) for d,x,s in items]
    for a in A: p(a[0])
    for a in A: p(a[1])

def kgen_loads(p):
    p(f"""s_lshl_b32 s20, s66, 9
    s_lshl_b32 s21, s77, 7
    s_add_u32 s20, s20, s21
    s_lshr_b32 s21, s20, 8
    s_lshl_b32 s21, s21, 1
    v_lshl_add_u32 v9, v1, 1, s20
    v_mov_b32 v8, s21""")

def kgen_issue(p):
    for j,ptr in enumerate((P_LOGA,P_AIM,P_CR,P_CI)):
        p.v(f"global_load_ushort v{10+j}, v9, s[{ptr}:{ptr+1}]","kp")
    p.v(f"global_load_ushort v14, v8, s[{P_LDT}:{P_LDT+1}]","kp")

def exp_rbf(p, d, x, t):
    p(f"""v_mul_f32 v{t}, {f32(L_HI)}, v{x}
    v_fma_f32 v{t+1}, v{x}, s22, -v{t}
    v_fmac_f32 v{t+1}, {f32(L_LO)}, v{x}
    v_exp_f32 v{t}, v{t}
    v_mul_f32 v{t+1}, {f32(0.6931471805599453)}, v{t+1}
    v_fmac_f32 v{t}, v{t}, v{t+1}
    v_cvt_pk_bf16_f32 v{t}, v{t}, v{t}
    v_and_b32 v{d}, 0xffff0000, v{t}""")

def kgen_compute(p, lds_tbl, split=None, st=None):
    S1,S8,S128,S256,S512,S1024,S2,S4 = 20,22,24,26,28,30,32,34
    B,A0,A1,A2 = 48,80,112,144
    PK=170; BF=192; AF=208; D=224
    def sp(k):
        if split: split(k)
        p(f"s_mov_b32 m0, s{lds_tbl}")
    p(f"""v_and_b32 v5, 15, v1
    v_lshrrev_b32 v6, 4, v1
    v_mul_u32_u24 v3, {ROWP}, v5
    v_lshl_add_u32 v3, v6, 4, v3
    v_add_u32 v3, s{lds_tbl}, v3
    s_mov_b32 s22, {f32(L_HI)}""")
    p(f"""v_lshrrev_b32 v7, 1, v6
    v_lshlrev_b32 v4, 9, v7
    v_lshl_add_u32 v4, v5, 5, v4
    v_and_b32 v16, 1, v6
    v_lshl_add_u32 v4, v16, 4, v4
    v_add_u32 v4, s{lds_tbl}, v4
    v_lshlrev_b32 v16, 8, v6
    v_sub_u32 v17, 4, v7
    v_lshlrev_b32 v17, v17, v5
    v_add3_u32 v17, v17, v16, s{lds_tbl}
    v_mul_u32_u24 v18, 120, v7
    v_add3_u32 v18, v18, v17, 8
    v_lshl_add_u32 v19, v5, 2, v16
    v_add_u32 v19, s{lds_tbl}, v19""")
    sp(0)
    p.wait(vm="kp")
    if st: st.take(p,1)
    for j in range(5): p(f"v_lshlrev_b32 v{10+j}, 16, v{10+j}")
    exp_rbf(p, 14, 14, 36)
    exp_rbf(p, 10, 10, 38)
    p(f"""v_mul_f32 v10, v10, v14
    v_mul_f32 v11, v11, v14
    v_add_f32 v14, v14, v14
    v_mul_f32 v10, {f32(-LOG2E)}, v10
    v_mul_f32 v11, 0.15915494, v11
    v_mul_f32 v{A0}, v12, v14
    v_mul_f32 v{A0+1}, v13, v14""")
    ev=[(S1,1.0),(S8,8.0),(S128,128.0)]
    for k,(S,pp) in enumerate(ev):
        if pp==1.0:
            p(f"v_mov_b32 v{36+2*k}, v10"); p(f"v_fract_f32 v{37+2*k}, v11")
        else:
            p(f"v_mul_f32 v{36+2*k}, {f32(pp)}, v10"); p(f"v_mul_f32 v{37+2*k}, {f32(pp)}, v11")
    for k in (1,2): p(f"v_fract_f32 v{37+2*k}, v{37+2*k}")
    for k,(S,pp) in enumerate(ev):
        p(f"v_exp_f32 v{36+2*k}, v{36+2*k}")
        p(f"v_cos_f32 v{S}, v{37+2*k}")
        p(f"v_sin_f32 v{S+1}, v{37+2*k}")
    for k,(S,pp) in enumerate(ev):
        p(f"v_pk_mul_f32 {vr(S,2)}, {vr(S,2)}, {vr(36+2*k,2)} op_sel:[0,0] op_sel_hi:[1,0]")
    b=lambda i:B+2*i; a0=lambda i:A0+2*i; a1=lambda i:A1+2*i; a2=lambda i:A2+2*i
    def put(rows, src, negim):
        for i in rows: p(f"v_cvt_pk_bf16_f32 v{PK+i}, v{src(i)}, {'-' if negim else ''}v{src(i)+1}")
        for i in rows: p.d(f"ds_write_addtid_b32 v{PK+i} offset:{i*ROWP}","w")
    def frags(R, tag):
        for s in range(4): p.d(f"ds_read_b128 {vr(R+4*s,4)}, v3 offset:{64*s}",tag)
    def mm(d):
        p.wait(lg="af")
        for s in range(4):
            p(f"v_mfma_f32_16x16x32_bf16 {vr(d,4)}, {vr(AF+4*s,4)}, {vr(BF+4*s,4)}, {'0' if s==0 else vr(d,4)}")
    p(f"v_mov_b32 v{b(0)}, 1.0"); p(f"v_mov_b32 v{b(0)+1}, 0")
    p(f"v_mov_b32 v{b(1)}, v{S8}"); p(f"v_mov_b32 v{b(1)+1}, v{S8+1}")
    cmul_batch(p, [(b(2),b(1),b(1)), (S2,S1,S1), (a0(1),a0(0),S1), (S256,S128,S128)])
    cmul_batch(p, [(b(3),b(2),b(1)), (b(4),b(2),b(2)), (S4,S2,S2), (a0(2),a0(0),S2), (a0(3),a0(1),S2), (S512,S256,S256)])
    cmul_batch(p, [(b(4+i),b(4),b(i)) for i in range(1,5)] + [(a0(4+i),a0(i),S4) for i in range(4)] + [(S1024,S512,S512)])
    cmul_batch(p, [(b(8+i),b(8),b(i)) for i in range(1,8)])
    put(range(16), b, True)
    frags(BF,"bf")
    cmul_batch(p, [(a0(8+i),a0(i),S128) for i in range(8)])
    put(range(16), a0, False)
    frags(AF,"af")
    sp(1)
    cmul_batch(p, [(a1(4*i+e),a0(8*i+2*e),S256) for i in range(2) for e in range(4)])
    cmul_batch(p, [(a1(8+2*i+e),a0(8*i+4*e),S512) for i in range(2) for e in range(2)] +
                  [(a1(8+2*i+e),a1(4*(i-2)+2*e),S512) for i in range(2,4) for e in range(2)])
    mm(D)
    put(range(16), a1, False)
    frags(AF,"af")
    src=[a0(0),a0(8),a1(0),a1(4),a1(8),a1(10),a1(12),a1(14)]
    cmul_batch(p, [(a2(i),src[i],S1024) for i in range(8)])
    cmul_batch(p, [(a2(8),a2(0),S1024)])
    mm(D+4)
    put(range(9), a2, False)
    frags(AF,"af")
    mm(D+8)
    p.d(f"ds_write_b128 v4, {vr(D,4)}","pw")
    p.d(f"ds_write_b64 v17, {vr(D+4,2)} offset:1024","pw")
    p.d(f"ds_write_b64 v18, {vr(D+6,2)} offset:1024","pw")
    for r in range(4):
        p.d(f"ds_write_b32 v19, v{D+8+r} offset:{2048+64*r}","pw")
    p.wait(lg="all")

KXP_OFF = 4160
def expand_index(p, GA, tid, t, part_base):
    p(f"v_lshlrev_b32 v{t}, 3, v{tid}")
    p(f"v_mov_b32 v{t+1}, 127")
    for e in range(9): p(f"v_sub_u32 v{GA+e}, {2047-e}, v{t}")
    for e in range(9): p(f"v_cvt_f32_i32 v{t+2+e}, v{GA+e}")
    for e in range(9): p(f"v_cvt_pk_bf16_f32 v{t+2+e}, v{t+2+e}, 0")
    for e in range(9): p(f"v_subrev_u32 v{t+2+e}, 17024, v{t+2+e}")
    for e in range(9): p(f"v_med3_i32 v{GA+e}, v{t+2+e}, v{GA+e}, v{t+1}")
    for e in range(9): p(f"v_lshlrev_b32 v{GA+e}, 2, v{GA+e}")
    if part_base:
        for e in range(9): p(f"v_add_u32 v{GA+e}, {part_base}, v{GA+e}")

def expand_run(p, GA, tid, T, emit, chs=(0,1)):
    for ch in chs:
        for e in range(9):
            p.d(f"ds_read2st64_b32 {vr(T+18*ch+2*e,2)}, v{GA+e} offset0:{34*ch} offset1:{34*ch+17}",("g",ch))
    p(f"v_cmp_ne_u32 vcc, 0xff, v{tid}")
    for ch in chs:
        p.wait(lg=[("g",ch)])
        b=T+18*ch
        for e in range(9): p(f"v_add_f32 v{b+2*e}, v{b+2*e}, v{b+2*e+1}")
        p(f"v_cndmask_b32 v{b+16}, 0, v{b+16}, vcc")
        O=T+36+8*ch
        for k in range(4): p(f"v_cvt_pk_bf16_f32 v{O+4+k}, v{b+4*k}, v{b+4*k+2}")
        for k in range(4): p(f"v_cvt_pk_bf16_f32 v{O+k}, v{b+4*k+2}, v{b+4*k+4}")
        emit(ch, O, O+4)
```

```python
import sys, os
from ka import *
HEAD = '.amdgcn_target "amdgcn-amd-amdhsa--gfx950"\n'
if __name__=="__main__":
    mode=sys.argv[1]; out=sys.argv[2]; stamps = sys.argv[3] if len(sys.argv)>3 else False
    if stamps=="rt": stamps=True
    if mode=="a":
        txt = f"; @launch kernel=ka_kernel grid=(256,1,1) block=(512,1,1) lds={LDS_A}\n"+HEAD+build_ka(stamps)
    elif mode=="ab":
        from kb import *
        txt = (f"; @launch kernel=ka_kernel grid=(256,1,1) block=(512,1,1) lds={LDS_A}\n"
               f"; @launch kernel=kb_kernel grid=(256,1,1) block=(512,1,1) lds={LDS_B}\n"+HEAD+build_ka(stamps)+build_kb(stamps))
    open(out,"w").write(txt)
```

```python
from asmlib import *
H_OFF   = 0x0
H_BYTES = 64*86*1024
WDF_OFF = 0x600000
WDF_BYTES = 16*88*1024
UT_OFF  = 0x800000
KX_OFF  = 0xA00000
KX_CH   = 8320
YT_OFF  = 0xF00000
G_OFF   = 0x1100000
ST_OFF  = 0x1200000
def P(i): return 32+2*i
P_U,P_LOGA,P_AIM,P_CR,P_CI,P_LDT,P_DSK,P_BX,P_WG,P_WU,P_WD,P_GW = [P(i) for i in range(12)]
P_OUT,P_DBG,P_WS = 56,58,60

def load_args(p):
    p("""s_load_dwordx16 s[32:47], s[0:1], 0
    s_load_dwordx8 s[48:55], s[0:1], 64
    s_load_dwordx4 s[56:59], s[0:1], 96
    s_load_dwordx2 s[60:61], s[0:1], 112""")

def srd(p, d, ptr, nbytes, off=0):
    if off:
        p(f"s_add_u32 s{d}, s{ptr}, {off:#x}")
        p(f"s_addc_u32 s{d+1}, s{ptr+1}, 0")
    else:
        p(f"s_mov_b32 s{d}, s{ptr}")
        p(f"s_mov_b32 s{d+1}, s{ptr+1}")
    p(f"s_mov_b32 s{d+2}, {nbytes:#x}")
    p(f"s_mov_b32 s{d+3}, 0x20000")

class Stamps:
    def __init__(self, on): self.on=on
    def take(self, p, k):
        if self.on:
            p(f"{'s_memtime' if self.on=='cyc' else 's_memrealtime'} s[{80+2*k}:{81+2*k}]")
    def flush(self, p, n, base_off, wg="s2", wave="s3"):
        if not self.on: return
        p("s_waitcnt lgkmcnt(0)")
        srd(p, 96, P_WS, 0x100000, ST_OFF+base_off)
        p(f"s_lshl_b32 s100, {wg}, 3")
        p(f"s_add_u32 s100, s100, {wave}")
        p(f"s_lshl_b32 s100, s100, 6")
        p("v_mov_b32 v250, 0")
        for k in range(n):
            p(f"v_mov_b32 v251, s{80+2*k}")
            p(f"buffer_store_dword v251, v250, s[96:99], s100 offen offset:{4*k}")
        p("s_waitcnt vmcnt(0)")

def code_prefetch(p, start, end, s_idx, tmp=250, nld=1, stride=32):
    u=p.uid()
    p(f"s_getpc_b64 s[26:27]")
    p.label(f"pf{u}")
    p(f"s_sub_u32 s26, s26, pf{u}-{start}")
    p(f"s_subb_u32 s27, s27, 0")
    p(f"s_lshl_b32 s28, s{s_idx}, 10")
    p(f"v_lshl_add_u32 v{tmp}, v1, 4, s28")
    p(f"v_mov_b32 v{tmp+1}, {end}-{start}-16")
    for i in range(nld):
        if i: p(f"v_add_u32 v{tmp}, {stride*1024}, v{tmp}")
        p(f"v_min_u32 v{tmp-1-i}, v{tmp}, v{tmp+1}")
        p(f"global_load_dwordx4 v[{tmp+2}:{tmp+5}], v{tmp-1-i}, s[26:27]")

class LaneStamps:
    def __init__(self, on): self.on=on; self.n=0; self.names=[]
    def take(self, p, name):
        if not self.on: return
        p("s_memrealtime s[98:99]"); p("s_waitcnt lgkmcnt(0)"); p(f"v_writelane_b32 v0, s98, {self.n}")
        p.lg.clear()
        self.n+=1; self.names.append(name)
    def take2(self, p):
        if not self.on: return
        nm=self.names; self.names=[]; self.take(p,""); self.names=nm
    def flush(self, p, base_off):
        if not self.on: return
        srd(p, 92, P_WS, 0x100000, ST_OFF+base_off)
        p("""s_lshl_b32 s100, s2, 3
        s_add_u32 s100, s100, s3
        s_lshl_b32 s100, s100, 8
        v_lshlrev_b32 v1, 2, v1
        buffer_store_dword v0, v1, s[92:95], s100 offen
        s_waitcnt vmcnt(0)""")
```

```python
from common import *
from kgen import *
import os
SLOT = 41216
XO, WGO, WUO = 0, 16384, 16384+12288+32
NST = 8
LDS_A = 163840
KSC  = 0
KXL  = 4*TBL
RING = 34816
SB = [RING, RING+SLOT, RING+2*SLOT]
assert RING+3*SLOT <= LDS_A
ROT = int(os.environ.get('ROT','4'))
PF = int(os.environ.get('PF','0'))
WDF_ST = 88
LX, LW = 236, 240
GA, TID = 243, 252
if os.environ.get('FUSED'): GA, TID = 48, 57
ET = 20

def ka_prologue(p, st):
    p.label("ka_start")
    p("s_cmp_ge_u32 s2, 256")
    p("s_cbranch_scc1 A_exit")
    load_args(p)
    st.take(p,0)
    p("""v_lshrrev_b32 v2, 6, v0
    v_and_b32 v1, 63, v0
    v_readfirstlane_b32 s3, v2
    s_and_b32 s62, s2, 7
    s_lshr_b32 s63, s2, 3
    s_and_b32 s64, s62, 1
    s_lshl_b32 s64, s64, 3
    s_and_b32 s65, s63, 7
    s_add_u32 s64, s64, s65
    s_lshr_b32 s65, s62, 1
    s_lshl_b32 s65, s65, 2
    s_lshr_b32 s66, s63, 3
    s_add_u32 s65, s65, s66          ; s65 = ft (0..15)
    s_lshl_b32 s66, s64, 4
    s_add_u32 s66, s66, s65          ; s66 = widx
    s_and_b32 s77, s3, 3             ; s77 = wave & 3""")
    if ROT==8:
        p("""s_and_b32 s76, s65, 3
        s_lshl_b32 s76, s76, 1
        s_add_u32 s76, s76, s64""")
    elif ROT==4:
        p("""s_add_u32 s76, s65, s64
        s_and_b32 s76, s76, 3
        s_lshl_b32 s76, s76, 1""")

def gelu_tile(p, acc, tmp, dst, cC0, cC1, cONE):
    prs = range(4)
    g = lambda i: vr(acc+2*i,2); u = lambda i: vr(acc+8+2*i,2)
    t = lambda i: vr(tmp+2*i,2); q = lambda i: vr(tmp+8+2*i,2)
    for i in prs: p(f"v_pk_mul_f32 {t(i)}, {g(i)}, {g(i)}")
    for i in prs: p(f"v_pk_fma_f32 {t(i)}, {t(i)}, {vr(cC1,2)}, {vr(cC0,2)}")
    for i in prs: p(f"v_pk_mul_f32 {t(i)}, {t(i)}, {g(i)}")
    for i in range(8): p(f"v_exp_f32 v{tmp+i}, v{tmp+i}")
    for i in prs: p(f"v_pk_mul_f32 {q(i)}, {g(i)}, {u(i)}")
    for i in prs: p(f"v_pk_add_f32 {t(i)}, {t(i)}, {vr(cONE,2)}")
    for i in range(8): p(f"v_rcp_f32 v{tmp+i}, v{tmp+i}")
    for i in prs: p(f"v_pk_mul_f32 {q(i)}, {q(i)}, {t(i)}")
    for i in prs: p(f"v_cvt_pk_bf16_f32 v{dst+i}, v{tmp+8+2*i}, v{tmp+9+2*i}")

def loader_setup(p, si=77, lx=LX, lw=LW, sx=72, sw=73):
    p(f"""v_lshrrev_b32 v2, 3, v1
    v_and_b32 v3, 7, v1              ; pos
    v_lshrrev_b32 v4, 4, v1          ; l>>4
    s_lshl_b32 s68, s64, 7           ; rb*128
    s_lshl_b32 s69, s{si}, 5
    s_add_u32 s68, s68, s69
    v_add_u32 v2, s68, v2
    v_lshlrev_b32 v2, 10, v2
    v_xor_b32 v5, v4, v3""")
    p(f"v_lshl_add_u32 v{lx}, v5, 4, v2")
    p(f"v_xor_b32 v{lx+1}, 64, v{lx}")
    p(f"v_add_u32 v{lx+1}, 8192, v{lx+1}")
    p(f"v_add_u32 v{lx+2}, 16384, v{lx}")
    p(f"v_add_u32 v{lx+3}, 16384, v{lx+1}")
    p(f"""s_mul_i32 s68, s{si}, 192
    s_mul_i32 s69, s65, 192          ; f0*2 bytes
    s_mov_b32 s70, 43691
    v_add_u32 v2, s68, v1""")
    for j in range(3):
        p(f"""v_add_u32 v5, {64*j}, v2
        v_mul_u32_u24 v6, s70, v5
        v_lshrrev_b32 v6, 19, v6         ; k = p/12
        v_mul_u32_u24 v6, {2752-192}, v6
        v_lshl_add_u32 v6, v5, 4, v6
        v_add_u32 v{lw+j}, s69, v6""")
    p(f"""s_lshl_b32 s{sx}, s{si}, 12
    s_mul_i32 s{sw}, s{si}, 3072
    s_add_u32 s{sw}, s{sw}, {WGO}""")

def loader_srds(p):
    srd(p, 4, P_U, 2048*1024)
    srd(p, 8, P_WG, 512*2752)
    srd(p, 12, P_WU, 512*2752)

def ka_issue(p, s, sets=((LX,LW,72,73),)):
    slot=SB[s%3]
    p(f"s_add_u32 s74, s76, {s}")
    p(f"s_and_b32 s74, s74, 7")
    p(f"s_mul_i32 s75, s74, {64*2752}")
    p(f"s_lshl_b32 s74, s74, 7")
    for lx,lw,sx,sw in sets:
        for j in range(4):
            p(f"s_add_u32 m0, s{sx}, {slot+XO+j*1024}")
            p.v(f"buffer_load_dwordx4 v{lx+j}, s[4:7], s74 offen lds", ("st",s))
    for lx,lw,sx,sw in sets:
        for j in range(3):
            p(f"s_add_u32 m0, s{sw}, {slot+j*1024}")
            p.v(f"buffer_load_dwordx4 v{lw+j}, s[8:11], s75 offen lds", ("st",s))
            p(f"s_add_u32 m0, s{sw}, {slot+j*1024+WUO-WGO}")
            p.v(f"buffer_load_dwordx4 v{lw+j}, s[12:15], s75 offen lds", ("st",s))

def x_addr(p, XA):
    p(f"""v_and_b32 v2, 31, v1             ; mm
    v_lshrrev_b32 v3, 5, v1          ; h
    v_bfe_u32 v4, v1, 1, 3           ; (mm>>1)&7
    s_lshl_b32 s69, s67, 13
    s_add_u32 s69, s69, {RING}
    v_lshlrev_b32 v5, 7, v2
    v_add_u32 v5, s69, v5""")
    for ks in range(4):
        p(f"v_or_b32 v6, {2*ks}, v3")
        p(f"v_xor_b32 v6, v6, v4")
        p(f"v_lshl_add_u32 v{XA+ks}, v6, 4, v5")
        for s in (1,2):
            p(f"v_add_u32 v{XA+4*s+ks}, {s*SLOT}, v{XA+ks}")

def ka_front(p, st):
    loader_srds(p)
    ka_issue(p, 0)
    p("""s_and_b32 s67, s3, 1
    s_lshr_b32 s68, s3, 1""")

def ka_compute(p, st, SC=""):
    ACC=16; FR=112; XA=152; WA=164; TMP=168; CST=184; OUT=192
    acc = lambda t,mt: ACC+(t*2+mt)*16
    fa = lambda s,t: FR+20*s+4*t
    fb = lambda s,mt: FR+20*s+12+4*mt
    p.vm=[("st",0)]*10
    x_addr(p, XA)
    p(f"""v_bfe_u32 v6, v1, 4, 1
    v_mul_u32_u24 v6, {WUO-WGO}, v6
    v_lshlrev_b32 v7, 3, v3          ; 8h
    v_bfe_u32 v8, v1, 2, 2
    v_add_u32 v7, v7, v8
    v_mul_u32_u24 v7, 192, v7
    v_add_u32 v6, v6, v7
    v_and_b32 v7, 3, v1
    v_lshl_add_u32 v6, v7, 3, v6
    s_mul_i32 s69, s68, 96
    s_add_u32 s69, s69, {RING+WGO}
    v_add_u32 v{WA}, s69, v6
    v_add_u32 v{WA+1}, {SLOT}, v{WA}
    v_add_u32 v{WA+2}, {2*SLOT}, v{WA}""")
    c0 = -2*0.7978845608028654*LOG2E
    p(f"""v_mov_b32 v{CST}, {f32(c0)}
    v_mov_b32 v{CST+1}, {f32(c0)}
    v_mov_b32 v{CST+2}, {f32(c0*0.044715)}
    v_mov_b32 v{CST+3}, {f32(c0*0.044715)}
    v_mov_b32 v{CST+4}, 1.0
    v_mov_b32 v{CST+5}, 1.0""")
    ka_issue(p, 1)
    srd(p, 16, P_WS, H_BYTES, H_OFF)
    p("""s_lshl_b32 s70, s64, 2
    s_lshl_b32 s71, s67, 1
    s_add_u32 s70, s70, s71
    s_mul_i32 s70, s70, 86
    s_mul_i32 s71, s65, 6
    s_mul_i32 s72, s68, 3
    s_add_u32 s71, s71, s72
    s_add_u32 s70, s70, s71
    s_lshl_b32 s70, s70, 10
    v_lshlrev_b32 v9, 4, v1""")
    def reads(s, ks, fs):
        slot = s%3
        L=[]
        for mt in range(2):
            L.append(f"ds_read_b128 {vr(fb(fs,mt),4)}, v{XA+4*slot+ks} offset:{XO+4096*mt}")
        for t in range(3):
            for half in range(2):
                L.append(f"ds_read_b64_tr_b16 {vr(fa(fs,t)+2*half,2)}, v{WA+slot} offset:{ks*3072+half*768+t*32}")
        return [L[0],L[2],L[3],L[1],L[4],L[5],L[6],L[7]]
    p.wait(vm=[("st",0)])
    st.take(p,1)
    p("s_barrier")
    st.take(p,2)
    for x in reads(0,0,0): p.d(x,"f")
    n=0
    for s in range(NST):
        for ks in range(4):
            fs = n%2
            p.wait(lg="all", vm=("all" if (s==0 and ks==3) else None))
            nxt=None
            if ks==3:
                if s<NST-1:
                    p("s_barrier"); nxt=reads(s+1,0,1-fs)
                    if s==3: st.take(p,3)
            else: nxt=reads(s,ks+1,1-fs)
            nxt = nxt or []
            k=0
            order=[(0,0),(0,1),(1,0),(1,1),(2,0),(2,1)]
            per=[2,2,2,1,1,0]
            for j,(t,mt) in enumerate(order):
                c = "0" if n==0 else vr(acc(t,mt),16)
                p(f"v_mfma_f32_32x32x16_bf16 {vr(acc(t,mt),16)}, {vr(fa(fs,t),4)}, {vr(fb(fs,mt),4)}, {c}")
                for _ in range(per[j]):
                    if k<len(nxt): p.d(nxt[k],"f"); k+=1
            n+=1
    st.take(p,4)
    for t in range(3):
        if t==2:
            p("s_cmp_ge_u32 s71, 84")
            p("s_cbranch_scc1 A_compute_done")
        for mt in range(2):
            o = OUT+4*((t*2+mt)%4)
            gelu_tile(p, acc(t,mt), TMP, o, CST, CST+2, CST+4)
            p(f"s_add_u32 s72, s70, {(mt*86+t)*1024}")
            p(f"buffer_store_dwordx4 {vr(o,4)}, v9, s[16:19], s72 offen{SC}")
    p.label("A_compute_done")
    st.take(p,5)

def ka_gate(p, st, SC=""):
    GW=16; XA=152; FB=48; AC=80
    gwreg=lambda s,ks: GW+16*(s%2)+4*ks
    p.label("A_gate")
    p.vm=[("st",0)]*10
    x_addr(p, XA)
    srd(p, 16, P_GW, 1024)
    p("v_lshlrev_b32 v14, 4, v3")
    def gwload(s):
        p(f"s_add_u32 s75, s76, {s}")
        p("s_and_b32 s75, s75, 7")
        p("s_lshl_b32 s75, s75, 7")
        for ks in range(4):
            p.v(f"buffer_load_dwordx4 {vr(gwreg(s,ks),4)}, v14, s[16:19], s75 offen offset:{32*ks}",("gw",s))
    ka_issue(p, 1)
    gwload(0)
    for s in range(NST):
        slot=s%3
        if s<2: p.wait(vm=[("st",s)])
        p("s_barrier")
        for ks in range(4):
            for mt in range(2):
                p.d(f"ds_read_b128 {vr(FB+(ks*2+mt)*4,4)}, v{XA+4*slot+ks} offset:{XO+4096*mt}","f")
        if s<NST-1: gwload(s+1)
        p.wait(vm=[("gw",s)], lg="all")
        for ks in range(4):
            for mt in range(2):
                c = "0" if (s==0 and ks==0) else vr(AC+16*mt,16)
                p(f"v_mfma_f32_32x32x16_bf16 {vr(AC+16*mt,16)}, {vr(gwreg(s,ks),4)}, {vr(FB+(ks*2+mt)*4,4)}, {c}")
    srd(p, 16, P_WS, 8192, G_OFF)
    p(f"""v_lshlrev_b32 v11, 2, v2
    s_lshl_b32 s70, s64, 9
    s_lshl_b32 s71, s67, 8
    s_add_u32 s70, s70, s71""")
    for mt in range(2):
        a=AC+16*mt
        p(f"""v_cvt_pk_bf16_f32 v12, v{a}, v{a}
        v_and_b32 v12, 0xffff0000, v12
        v_mul_f32 v12, {f32(-LOG2E)}, v12
        v_exp_f32 v12, v12
        v_add_f32 v12, 1.0, v12
        v_rcp_f32 v12, v12
        v_cvt_pk_bf16_f32 v12, v12, v12
        v_and_b32 v{6+mt}, 0xffff0000, v12
        buffer_store_dword v{6+mt}, v11, s[16:19], s70 offen offset:{128*mt}{SC}""")
    st.take(p,5)

def ka_ut(p, s, SC=""):
    u=p.uid()
    TR=144
    p(f"""s_lshr_b32 s20, s65, 2
    s_cmp_lg_u32 s20, {s}
    s_cbranch_scc1 A_nout{u}""")
    p(f"""v_lshrrev_b32 v44, 4, v1
    v_bfe_u32 v45, v1, 2, 2
    v_bfe_u32 v46, v1, 1, 1
    v_lshlrev_b32 v44, 4, v44
    v_lshl_add_u32 v44, v46, 3, v44
    v_add_u32 v44, v44, v45
    v_bfe_u32 v45, v44, 1, 3
    v_lshlrev_b32 v44, 7, v44
    v_lshl_add_u32 v44, v45, 4, v44
    v_and_b32 v45, 1, v1
    v_lshl_add_u32 v44, v45, 3, v44
    s_and_b32 s20, s77, 1
    s_lshl_b32 s21, s20, 13
    s_add_u32 s21, s21, {SB[s%3]+XO}
    v_add_u32 v44, s21, v44
    s_lshr_b32 s21, s77, 1
    s_lshl_b32 s21, s21, 6
    v_xor_b32 v44, s21, v44""")
    for cg in range(4):
        for half in range(2):
            p(f"v_xor_b32 v{186+(2*cg+half)%4}, {(cg<<4)^(half*32)}, v44")
            p(f"ds_read_b64_tr_b16 {vr(TR+4*cg+2*half,2)}, v{186+(2*cg+half)%4} offset:{half*512}")
    srd(p, 28, P_WS, 512*4096, UT_OFF)
    p(f"""v_and_b32 v45, 7, v1
    v_lshlrev_b32 v45, 12, v45
    v_lshrrev_b32 v46, 3, v1
    v_lshl_add_u32 v45, v46, 4, v45
    s_lshl_b32 s20, s20, 7
    s_lshl_b32 s21, s21, 11
    s_add_u32 s20, s20, s21
    s_lshl_b32 s21, s64, 8
    s_add_u32 s20, s20, s21
    s_add_u32 s21, s76, {s}
    s_and_b32 s21, s21, 7
    s_lshl_b32 s21, s21, 18
    s_add_u32 s20, s20, s21
    s_waitcnt lgkmcnt(0)""")
    for cg in range(4):
        p(f"buffer_store_dwordx4 {vr(TR+4*cg,4)}, v45, s[28:31], s20 offen{SC}")
        if cg<3: p(f"s_add_u32 s20, s20, {8*4096}")
    p.label(f"A_nout{u}")

def ka_expand(p, fused, ch):
    if not fused:
        srd(p, 28, P_WS, 512*KX_CH, KX_OFF)
        p(f"s_mul_i32 s20, s66, {2*KX_CH}")
    p(f"v_lshlrev_b32 v18, 4, v{TID}")
    def emit(ch,Q,Pp):
        if fused:
            p.d(f"ds_write_b128 v18, {vr(Q,4)} offset:{KXL+ch*KX_CH}","kx")
            p.d(f"ds_write_b128 v18, {vr(Pp,4)} offset:{KXL+ch*KX_CH+KXP_OFF}","kx")
            return
        p(f"s_add_u32 s21, s20, {ch*KX_CH}")
        p.v(f"buffer_store_dwordx4 {vr(Q,4)}, v18, s[28:31], s21 offen","kx")
        p(f"s_add_u32 s21, s20, {ch*KX_CH+KXP_OFF}")
        p.v(f"buffer_store_dwordx4 {vr(Pp,4)}, v18, s[28:31], s21 offen","kx")
    expand_run(p, GA, TID, ET, emit, (ch,))
    if ch==0:
        if fused: p.wait(lg='all')
        return
    u=p.uid()
    p(f"""v_lshrrev_b32 v19, 2, v{TID}
    v_mul_u32_u24 v19, {KXP_OFF}, v19
    v_and_b32 v{ET}, 3, v{TID}
    v_lshl_add_u32 v19, v{ET}, 4, v19
    v_add_u32 v19, 4096, v19
    v_mov_b32 v{ET}, 0
    v_mov_b32 v{ET+1}, 0
    v_mov_b32 v{ET+2}, 0
    v_mov_b32 v{ET+3}, 0
    v_cmp_gt_u32 vcc, 16, v{TID}
    s_and_saveexec_b64 s[22:23], vcc
    s_cbranch_execz A_notail{u}""")
    if fused: p(f"ds_write_b128 v19, {vr(ET,4)} offset:{KXL}")
    else: p(f"buffer_store_dwordx4 {vr(ET,4)}, v19, s[28:31], s20 offen")
    p.label(f"A_notail{u}")
    p("s_mov_b64 exec, s[22:23]")
    if fused: p.wait(lg="all")

def ka_helper(p, st, fused=False, SC=""):
    p.label("A_helper")
    p.vm=["kp"]*5
    loader_srds(p)
    p(f"v_subrev_u32 v{TID}, 256, v0")
    expand_index(p, GA, TID, ET, KSC)
    p(f"s_mul_i32 s23, s77, {TBL}")
    def issue(s):
        u=p.uid()
        p("s_cmp_eq_u32 s65, 15")
        p(f"s_cbranch_scc1 A_noissue{u}")
        ka_issue(p, s)
        p.label(f"A_noissue{u}")
    kgen_compute(p, 23, None, st)
    st.take(p,2)
    for s in range(NST):
        if s>=2: p.wait(vm=[("st",s)])
        if s==4: st.take(p,4)
        p("s_barrier")
        if s+2<NST: issue(s+2)
        if s<2: ka_ut(p, s, SC)
        if s==2: st.take(p,3)
    ka_expand(p, fused, 0)
    ka_expand(p, fused, 1)
    st.take(p,5)

def ka_wdf(p, st, SC=""):
    p.label("A_wdf")
    p(f"""v_lshrrev_b32 v2, 4, v1
    v_and_b32 v3, 15, v1
    v_lshlrev_b32 v10, 10, v2
    v_lshl_add_u32 v10, v3, 4, v10
    s_lshl_b32 s68, s77, 8
    v_add_u32 v10, s68, v10
    s_mul_i32 s72, s77, 24576
    s_add_u32 s72, s72, {RING}
    s_lshl_b32 s68, s64, 14
    s_waitcnt lgkmcnt(0)""")
    srd(p, 4, P_WD, 1376*1024)
    for j in range(6):
        for k in range(4):
            p(f"s_add_u32 s74, s68, {j*16*16384+k*4096}")
            p(f"s_add_u32 m0, s72, {j*4096+k*1024}")
            p.v(f"buffer_load_dwordx4 v10, s[4:7], s74 offen lds",("u",j))
    p("""v_lshrrev_b32 v4, 5, v1
    v_bfe_u32 v5, v1, 2, 2
    v_lshl_add_u32 v4, v4, 2, v5
    v_lshlrev_b32 v4, 8, v4
    v_and_b32 v5, 1, v1
    v_lshl_add_u32 v4, v5, 5, v4
    v_bfe_u32 v5, v1, 4, 1
    v_lshl_add_u32 v4, v5, 4, v4
    v_bfe_u32 v5, v1, 1, 1
    v_lshl_add_u32 v4, v5, 3, v4
    v_add_u32 v4, s72, v4
    v_lshlrev_b32 v9, 4, v1""")
    srd(p, 8, P_WS, 16*WDF_ST*1024, WDF_OFF)
    p(f"""s_mul_i32 s70, s77, {4*WDF_ST}
    s_add_u32 s70, s70, s64
    s_lshl_b32 s70, s70, 10""")
    for j in range(6):
        if j==5:
            p("s_cmp_ge_u32 s64, 8")
            p("s_cbranch_scc1 A_wdf_done")
        p.wait(vm=[("u",j)])
        R=96+16*(j%2)
        for x in range(4):
            for half in range(2):
                p.d(f"ds_read_b64_tr_b16 {vr(R+4*x+2*half,2)}, v4 offset:{j*4096+half*2048+x*64}",("x",x))
        for x in range(4):
            p.wait(lg=[("x",x)])
            p(f"s_add_u32 s74, s70, {(x*WDF_ST+16*j)*1024}")
            p.v(f"buffer_store_dwordx4 {vr(R+4*x,4)}, v9, s[8:11], s74 offen{SC}","o")
    p.label("A_wdf_done")
    st.take(p,5)

def build_ka(stamps=False):
    st=Stamps(stamps)
    p=Prog()
    ka_prologue(p, st)
    if PF:
        p("s_lshl_b32 s29, s63, 3\ns_add_u32 s29, s29, s3\ns_and_b32 s29, s29, 31")
        code_prefetch(p, "ka_start", "ka_end", 29, tmp=226)
    loader_setup(p)
    kgen_loads(p)
    p("""s_waitcnt lgkmcnt(0)
    s_cmp_lt_u32 s3, 4
    s_cbranch_scc1 A_front""")
    kgen_issue(p)
    p("s_barrier")
    p("s_branch A_helper")
    p.label("A_front")
    p("s_barrier")
    p("""s_cmp_eq_u32 s65, 15
    s_cbranch_scc1 A_wdf""")
    ka_front(p, st)
    p("""s_add_u32 s20, s65, s68
    s_cmp_eq_u32 s20, 15
    s_cbranch_scc1 A_gate""")
    parts=[p]
    for fn in (ka_compute, ka_gate, ka_helper, ka_wdf):
        q=Prog(); st.on=stamps; fn(q, st); st.on=stamps
        q("s_waitcnt vmcnt(0)")
        st.take(q,6); st.flush(q,7,0)
        q("s_endpgm")
        parts.append(q)
    lines=sum((q.L for q in parts),[])+["A_exit:","    s_endpgm","ka_end:"]
    return kernel_text("ka_kernel", lines)
```

```python
from ka import *
LDS_B = 163840
FUSED = bool(os.environ.get("FUSED"))
UTL  = SB[2] if FUSED else RING
UTW  = 4608
NRING = 5
RINGB = NRING*2048
if FUSED: UTL = SB[0]
XCH  = 0 if FUSED else UTL + 4*UTW
RED  = SB[1] if FUSED else XCH + 4*4096
RED3 = SB[0] + 2*UTW + 8192 if FUSED else RED+3*12288
YS   = UTL + 2*UTW if FUSED else RED + 4*12288
YP   = 192
LFLAG = KXL + 2*KX_CH
assert LFLAG+64 <= RING and YS+8192 <= LDS_B and RED3+12288 <= SB[1]
NSTEP = 22

def kb_decode(p):
    p("""s_lshl_b32 s78, s62, 2
    s_lshr_b32 s79, s63, 3
    s_add_u32 s78, s78, s79
    s_and_b32 s79, s63, 7""")

def conv_setup(p, shared=False):
    FA=4; GAa=8
    p(f"""v_lshlrev_b32 v2, 4, v1
    v_and_b32 v10, 15, v1            ; i / a
    v_lshrrev_b32 v11, 4, v1         ; q
    s_lshr_b32 s20, s77, 1
    s_and_b32 s21, s77, 1            ; half
    v_and_b32 v12, 1, v10
    v_mul_u32_u24 v12, {KXP_OFF}, v12
    v_lshrrev_b32 v13, 1, v10
    v_lshlrev_b32 v14, 2, v11
    v_sub_u32 v13, v14, v13
    v_lshl_add_u32 v12, v13, 2, v12
    s_mul_i32 s22, s20, {KX_CH}
    s_lshl_b32 s23, s21, 8
    s_sub_u32 s22, s22, s23
    s_add_u32 s22, s22, {KXL + 4*(1015-48-128)}
    v_add_u32 v{FA}, s22, v12""")
    for j in range(1,4): p(f"v_subrev_u32 v{FA+j}, {1024*j}, v{FA}")
    p(f"""s_mul_i32 s22, {'s20' if shared else 's77'}, {UTW}
    s_add_u32 s22, s22, {UTL}
    v_add_u32 v9, s22, v2
    s_sub_u32 s22, s22, s23
    s_add_u32 s22, s22, {448-192}
    v_lshlrev_b32 v12, 5, v10
    v_lshl_add_u32 v12, v11, 4, v12
    v_add_u32 v{GAa}, s22, v12""")

def conv_ut_load(p, SC):
    srd(p, 4, P_WS, 512*4096, UT_OFF)
    p(f"""s_lshl_b32 s22, s66, 1
    s_add_u32 s22, s22, s20
    s_lshl_b32 s22, s22, 12""")
    for k in range(4):
        p.v(f"buffer_load_dwordx4 {vr(16+4*k,4)}, v2, s[4:7], s22 offen offset:{1024*k}{SC}","ut")

def conv_ut_stage(p):
    p("""v_mov_b32 v32, 0
    v_mov_b32 v33, 0
    v_mov_b32 v34, 0
    v_mov_b32 v35, 0""")
    p.d("ds_write_b128 v9, v[32:35]","z")
    p.wait(vm="ut")
    for k in range(4):
        p.d(f"ds_write_b128 v9, {vr(16+4*k,4)} offset:{480+1024*k}","z")

def conv_reads(k):
    FA=4; GAa=8; FR=48
    F=lambda b,i: FR+64*b+4*i
    G=lambda b,j: FR+64*b+32+4*j
    b=k%2; L=[]
    for x in range(8):
        o=(3-k)*16+(128 if x%2==0 else 0)
        L.append((f"ds_read2_b32 {vr(F(b,x),2)}, v{FA+x//2} offset0:{o} offset1:{o+1}",("F",k,x)))
        L.append((f"ds_read2_b32 {vr(F(b,x)+2,2)}, v{FA+x//2} offset0:{o+2} offset1:{o+3}",("F",k,x)))
        L.append((f"ds_read_b128 {vr(G(b,x),4)}, v{GAa} offset:{(3-k)*64+512*x}",("G",k,x)))
    return L

def conv_main(p, st, pre=False):
    ACC=16; FR=48
    F=lambda b,i: FR+64*b+4*i
    G=lambda b,j: FR+64*b+32+4*j
    if not pre:
        for ins,tag in conv_reads(0): p.d(ins,tag)
    for k in range(4):
        b=k%2
        nxt = conv_reads(k+1) if k<3 else []
        pairs=sorted([(i,j) for i in range(8) for j in range(8) if i+j<8], key=lambda ij:(max(ij),ij))
        seen=set(); have=-1; z=0
        for n,(i,j) in enumerate(pairs):
            m=max(i,j)
            if m>have:
                p.wait(lg=[("G",k,m)]); have=m
            t=i+j
            c = "0" if (k==0 and t not in seen) else vr(ACC+4*t,4)
            seen.add(t)
            p(f"v_mfma_f32_16x16x32_bf16 {vr(ACC+4*t,4)}, {vr(F(b,i),4)}, {vr(G(b,j),4)}, {c}")
            if n>=8 and z<len(nxt) :
                p.d(*nxt[z]); z+=1
        while z<len(nxt): p.d(*nxt[z]); z+=1

def conv_finish(p, st, SC):
    ACC=16
    u=p.uid()
    p(f"""s_cmp_eq_u32 s21, 0
    s_cbranch_scc1 B_noswap{u}""")
    for k in range(16): p(f"v_swap_b32 v{ACC+k}, v{ACC+16+k}")
    p.label(f"B_noswap{u}")
    p(f"""s_lshl_b32 s22, s77, 12
    s_xor_b32 s23, s22, 4096
    s_add_u32 s22, s22, {XCH}
    s_add_u32 s23, s23, {XCH}
    v_add_u32 v10, s22, v2
    v_add_u32 v11, s23, v2
    s_lshl_b32 s22, s77, 2
    s_add_u32 s22, s22, {LFLAG}
    v_mov_b32 v12, s22
    v_xor_b32 v13, 4, v12
    v_mov_b32 v14, 1""")
    for k in range(4): p(f"ds_write_b128 v10, {vr(ACC+16+4*k,4)} offset:{1024*k}")
    p("s_waitcnt lgkmcnt(0)")
    p("ds_write_b32 v12, v14")
    srd(p, 4, P_WS, 512*4096, YT_OFF)
    p(f"""v_and_b32 v15, 15, v1
    v_lshlrev_b32 v15, 5, v15
    v_bfe_u32 v48, v1, 4, 1
    v_lshl_add_u32 v15, v48, 9, v15
    v_lshrrev_b32 v48, 5, v1
    v_lshl_add_u32 v15, v48, 4, v15
    s_lshl_b32 s22, s66, 1
    s_add_u32 s22, s22, s20
    s_lshl_b32 s22, s22, 12
    s_lshl_b32 s23, s21, 11
    s_add_u32 s22, s22, s23""")
    p.label(f"B_pair{u}")
    p(f"""ds_read_b32 v48, v13
    s_waitcnt lgkmcnt(0)
    v_readfirstlane_b32 s23, v48
    s_cmp_lg_u32 s23, 0
    s_cbranch_scc1 B_pairok{u}
    s_sub_u32 s101, s101, 1
    s_cmp_lt_i32 s101, 0
    s_cbranch_scc0 B_pair{u}
B_pairok{u}:""")
    for k in range(4): p(f"ds_read_b128 {vr(ACC+16+4*k,4)}, v11 offset:{1024*k}")
    p("s_waitcnt lgkmcnt(0)")
    for k in range(8): p(f"v_pk_add_f32 {vr(ACC+2*k,2)}, {vr(ACC+2*k,2)}, {vr(ACC+16+2*k,2)}")
    for t in range(4):
        for z in range(2): p(f"v_cvt_pk_bf16_f32 v{48+2*t+z}, v{ACC+4*t+2*z}, v{ACC+4*t+2*z+1}")
    for pr in range(2):
        for z in range(2): p(f"v_permlane16_swap_b32 v{48+4*pr+z}, v{48+4*pr+2+z}")
    for pr in range(2):
        p(f"buffer_store_dwordx4 {vr(48+4*pr,4)}, v15, s[4:7], s22 offen offset:{1024*pr}{SC}")

def lds_last(p, lbl_skip, cnt):
    p(f"""v_mov_b32 v12, {LFLAG+16}
    v_mov_b32 v14, 1
    s_mov_b64 s[22:23], exec
    s_mov_b64 exec, 1
    ds_add_rtn_u32 v13, v12, v14
    s_waitcnt lgkmcnt(0)
    v_readfirstlane_b32 s24, v13
    s_mov_b64 exec, s[22:23]
    s_cmp_lg_u32 s24, {cnt-1}
    s_cbranch_scc1 {lbl_skip}""")

class Pool:
    def __init__(self, base, n): self.free=[base+8*i for i in range(n)]
    def get(self): return self.free.pop(0)
    def put(self, r): self.free.append(r)

def gemm2_setup(p):
    srd(p, 4, P_WS, H_BYTES, H_OFF)
    srd(p, 8, P_WS, WDF_BYTES, WDF_OFF)
    p(f"""v_lshlrev_b32 v6, 4, v1
    s_and_b32 s20, s77, 1
    s_lshl_b32 s21, s78, 1
    s_add_u32 s21, s21, s20
    s_mul_i32 s22, s21, {86*1024}
    v_add_u32 v2, s22, v6
    s_xor_b32 s21, s21, 1
    s_mul_i32 s22, s21, {86*1024}
    v_add_u32 v3, s22, v6
    s_lshr_b32 s20, s77, 1
    s_lshl_b32 s21, s79, 1
    s_add_u32 s21, s21, s20
    s_mul_i32 s22, s21, {WDF_ST*1024}
    v_add_u32 v4, s22, v6
    s_xor_b32 s21, s21, 1
    s_mul_i32 s22, s21, {WDF_ST*1024}
    v_add_u32 v5, s22, v6""")
    p(f"""s_lshr_b32 s25, s63, 3
    s_lshl_b32 s25, s25, 1
    s_add_u32 s24, s79, s25
    s_mul_i32 s24, s24, 11
    s_lshr_b32 s24, s24, 2
    s_cmp_ge_u32 s24, {NSTEP}
    s_cselect_b32 s25, {NSTEP}, 0
    s_sub_u32 s24, s24, s25
    s_lshl_b32 s24, s24, 2
    s_add_u32 s24, s24, s77
    s_lshl_b32 s24, s24, 10
    s_mov_b32 s25, s24
    s_lshl_b32 s26, s77, 10""")

def adv(p, r):
    p(f"""s_add_u32 s{r}, s{r}, 4096
    s_cmp_ge_u32 s{r}, {88*1024}
    s_cselect_b32 s{r}, s26, s{r}""")

class Gemm2:
    ACC=16
    def __init__(self, p, SC):
        self.p=p; self.SC=SC; self.pool=Pool(80,22); self.W={}; self.H={}; self.nw=0; self.nh=0; self.spill=None
    def ldw(self):
        p=self.p; s=self.nw; r=self.pool.get(); self.W[s]=r; self.nw+=1
        if self.spill:
            a,s0=self.spill
            p.d(f"ds_read_b128 {vr(r,4)}, v{a} offset:{(s-s0)*2048}",("w",s))
            p.d(f"ds_read_b128 {vr(r+4,4)}, v{a} offset:{(s-s0)*2048+1024}",("w",s))
            return
        scw = os.environ.get("SCW", self.SC)
        thr = int(os.environ.get("THR","99"))
        if s>=thr: p.wait(vm=[("w",s-thr)])
        p.v(f"buffer_load_dwordx4 {vr(r,4)}, v4, s[8:11], s24 offen{scw}",("w",s))
        p.v(f"buffer_load_dwordx4 {vr(r+4,4)}, v5, s[8:11], s24 offen{scw}",("w",s))
        adv(p,24)
    def ldh(self):
        p=self.p; s=self.nh; r=self.pool.get(); self.H[s]=r; self.nh+=1
        p(f"s_min_u32 s27, s25, {85*1024}")
        p.v(f"buffer_load_dwordx4 {vr(r,4)}, v2, s[4:7], s27 offen{self.SC}",("h",s))
        p.v(f"buffer_load_dwordx4 {vr(r+4,4)}, v3, s[4:7], s27 offen{self.SC}",("h",s))
        adv(p,25)
    def run(self, late=None, depth=99):
        p=self.p
        for s in range(NSTEP):
            p.wait(vm=[("w",s),("h",s)], lg=[("w",s)])
            w,h=self.W[s],self.H[s]
            for dz in range(2):
                for mz in range(2):
                    a=self.ACC+16*(2*dz+mz)
                    p(f"v_mfma_f32_32x32x16_bf16 {vr(a,16)}, {vr(w+4*dz,4)}, {vr(h+4*mz,4)}, {'0' if s==0 else vr(a,16)}")
            self.pool.put(w); self.pool.put(h)
            if self.spill:
                for _ in range(2):
                    if self.nh<min(NSTEP,s+1+depth): self.ldh()
                if self.nw<NSTEP and self.nw<=s+3: self.ldw()
            else:
                for _ in range(2):
                    if self.nw<NSTEP and (self.nw<=self.nh or self.nh>=NSTEP): self.ldw()
                    elif self.nh<NSTEP: self.ldh()
            if late: late(s)

def gemm2_epi_loads(p, X, gsrd=True):
    srd(p, 12, P_U, 2048*1024)
    srd(p, 8, P_DSK, 1024)
    if gsrd: srd(p, 28, P_WS, 8192, G_OFF)
    p(f"""v_and_b32 v8, 31, v1
    v_lshrrev_b32 v9, 5, v1
    s_lshl_b32 s20, s78, 1
    s_and_b32 s21, s77, 1
    s_add_u32 s20, s20, s21
    s_lshl_b32 s20, s20, 5
    v_add_u32 v10, s20, v8
    s_lshl_b32 s21, s79, 1
    s_lshr_b32 s22, s77, 1
    s_add_u32 s21, s21, s22
    s_lshl_b32 s21, s21, 6
    v_lshl_add_u32 v11, v9, 5, s21
    v_lshl_add_u32 v7, v10, 10, v11
    v_lshlrev_b32 v10, 2, v10""")
    for k in range(2):
        p.v(f"buffer_load_dwordx4 {vr(X+4*k,4)}, v7, s[12:15], 0 offen offset:{16*k}","e")
        p.v(f"buffer_load_dwordx4 {vr(X+8+4*k,4)}, v11, s[8:11], 0 offen offset:{16*k}","e")

def gemm2_finish(p, st, X, poll_y, SC):
    ACC=16
    T=80 if X>=160 else 176
    p(f"v_lshlrev_b32 v6, 4, v1")
    for z in range(1,4):
        p(f"""s_xor_b32 s20, s77, {z}
        s_mul_i32 s21, s20, 12288
        s_cmp_eq_u32 s20, 3
        s_cselect_b32 s21, {RED3-RED}, s21
        s_add_u32 s21, s21, {RED+(z-1)*4096}
        v_add_u32 v{11+z}, s21, v6""")
    for z in range(1,4):
        for k in range(4):
            p.d(f"ds_write_b128 v{11+z}, {vr(ACC+16*z+4*k,4)} offset:{1024*k}","pw")
    st.take(p,3)
    poll_y(p)
    st.take(p,4)
    p.wait(lg="all")
    srd(p, 12, P_WS, 512*4096, YT_OFF)
    p(f"""v_lshrrev_b32 v12, 3, v1
    v_and_b32 v13, 7, v1
    v_lshlrev_b32 v14, 12, v12
    v_lshl_add_u32 v14, v13, 4, v14
    s_lshl_b32 s20, s79, 6
    s_lshl_b32 s21, s77, 4
    s_add_u32 s20, s20, s21
    s_lshl_b32 s20, s20, 12
    s_lshl_b32 s21, s78, 7
    s_add_u32 s20, s20, s21
    s_add_u32 s21, s20, {8*4096}""")
    p.v(f"buffer_load_dwordx4 v[32:35], v14, s[12:15], s20 offen{SC}","y")
    p.v(f"buffer_load_dwordx4 v[36:39], v14, s[12:15], s21 offen{SC}","y")
    p.v(f"buffer_load_dword v{X+16}, v10, s[28:31], 0 offen{SC}","y")
    p(f"""v_mul_u32_u24 v12, {YP}, v12
    v_lshl_add_u32 v12, v13, 4, v12
    s_mul_i32 s20, s77, {16*YP}
    s_add_u32 s20, s20, {YS}
    v_add_u32 v12, s20, v12""")
    p(f"""v_bfe_u32 v13, v1, 2, 2
    v_lshl_add_u32 v13, v9, 4, v13
    v_mul_u32_u24 v13, {YP}, v13
    v_bfe_u32 v14, v1, 4, 1
    v_lshl_add_u32 v13, v14, 5, v13
    v_and_b32 v14, 3, v1
    v_lshl_add_u32 v13, v14, 3, v13
    s_lshr_b32 s20, s77, 1
    s_mul_i32 s20, s20, {32*YP}
    s_and_b32 s21, s77, 1
    s_lshl_b32 s21, s21, 6
    s_add_u32 s20, s20, s21
    s_add_u32 s20, s20, {YS}
    v_add_u32 v13, s20, v13
    s_mul_i32 s20, s77, 12288
    s_cmp_eq_u32 s77, 3
    s_cselect_b32 s20, {RED3-RED}, s20
    s_add_u32 s20, s20, {RED}
    v_add_u32 v14, s20, v6""")
    srd(p, 8, P_OUT, 2048*1024)
    p.wait(vm="all")
    p.d(f"ds_write_b128 v12, v[32:35]","y")
    p.d(f"ds_write_b128 v12, v[36:39] offset:{8*YP}","y")
    p.wait(lg="all")
    p("s_barrier")
    st.take(p,5)
    for j in range(4): p.d(f"ds_read_b64_tr_b16 {vr(40+2*j,2)}, v13 offset:{4*j*YP}","yt")
    for z in range(3):
        for k in range(4):
            p.d(f"ds_read_b128 {vr(T+16*z+4*k,4)}, v14 offset:{4096*z+1024*k}",("r",z))
    A=48; U=T+48; Dd=T+64
    for k in range(8):
        p(f"v_lshlrev_b32 v{U+2*k}, 16, v{X+k}")
        p(f"v_and_b32 v{U+2*k+1}, 0xffff0000, v{X+k}")
        p(f"v_lshlrev_b32 v{Dd+2*k}, 16, v{X+8+k}")
        p(f"v_and_b32 v{Dd+2*k+1}, 0xffff0000, v{X+8+k}")
    p(f"v_mov_b32 v{X+17}, v{X+16}")
    p(f"v_sub_f32 v{X+18}, 1.0, v{X+16}")
    p(f"v_sub_f32 v{X+19}, 1.0, v{X+16}")
    p.wait(lg="yt")
    for k in range(8):
        p(f"v_lshlrev_b32 v{A+2*k}, 16, v{40+k}")
        p(f"v_and_b32 v{A+2*k+1}, 0xffff0000, v{40+k}")
    for k in range(8): p(f"v_pk_fma_f32 {vr(A+2*k,2)}, {vr(U+2*k,2)}, {vr(Dd+2*k,2)}, {vr(A+2*k,2)}")
    for k in range(8): p(f"v_pk_mul_f32 {vr(A+2*k,2)}, {vr(A+2*k,2)}, {vr(X+16,2)}")
    for z in range(3):
        p.wait(lg=[("r",z)])
        for k in range(8): p(f"v_pk_add_f32 {vr(ACC+2*k,2)}, {vr(ACC+2*k,2)}, {vr(T+16*z+2*k,2)}")
    for k in range(8): p(f"v_pk_fma_f32 {vr(A+2*k,2)}, {vr(ACC+2*k,2)}, {vr(X+18,2)}, {vr(A+2*k,2)}")
    for k in range(8): p(f"v_cvt_pk_bf16_f32 v{32+k}, v{A+2*k}, v{A+2*k+1}")
    for k in range(2):
        p(f"buffer_store_dwordx4 {vr(32+4*k,4)}, v7, s[8:11], 0 offen offset:{16*k}")

def build_kb(stamps=False):
    st=Stamps(stamps)
    p=Prog()
    p("s_cmp_ge_u32 s2, 256")
    p("s_cbranch_scc1 B_exit")
    load_args(p)
    st.take(p,0)
    p("""v_lshrrev_b32 v2, 6, v0
    v_and_b32 v1, 63, v0
    v_readfirstlane_b32 s3, v2
    s_and_b32 s62, s2, 7
    s_lshr_b32 s63, s2, 3
    s_mov_b32 s66, s2
    s_and_b32 s77, s3, 3""")
    kb_decode(p)
    p("""s_cmp_lt_u32 s3, 4
    s_cbranch_scc1 B_conv""")
    p("s_waitcnt lgkmcnt(0)")
    gemm2_setup(p)
    p("s_barrier")
    g=Gemm2(p,"")
    for s in range(11): g.ldw(); g.ldh()
    p("s_barrier")
    st.take(p,1)
    X=[None]
    def late(s):
        if s==NSTEP-4:
            pass
    g.run()
    st.take(p,2)
    Xr=160
    gemm2_epi_loads(p, Xr)
    def poll_y(p):
        u=p.uid()
        p(f"""s_lshl_b32 s20, s79, 5
        v_mov_b32 v12, s20""")
        p.label(f"B_poll{u}")
        p(f"""global_load_dword v13, v12, s[{P_DBG}:{P_DBG+1}] sc1
        s_waitcnt vmcnt(0)
        v_readfirstlane_b32 s21, v13
        s_cmp_lt_u32 s21, 32
        s_cbranch_scc0 B_polled{u}
        s_sleep 2
        s_branch B_poll{u}""")
        p.label(f"B_polled{u}")
        p.vm.clear()
    gemm2_finish(p, st, Xr, poll_y, " sc1")
    p("s_waitcnt vmcnt(0)")
    st.take(p,6); st.flush(p,7,0x20000)
    p("s_endpgm")
    q=Prog()
    q.label("B_conv")
    conv_setup(q)
    q("s_waitcnt lgkmcnt(0)")
    conv_ut_load(q, "")
    srd(q, 8, P_WS, 512*KX_CH, KX_OFF)
    q(f"""s_mul_i32 s24, s66, {2*KX_CH}
    s_lshl_b32 s25, s77, 10
    s_add_u32 s24, s24, s25
    s_add_u32 s25, s25, {KXL}""")
    for k in range(5):
        if k==4:
            q("s_cmp_lg_u32 s77, 0"); q("s_cbranch_scc1 B_kxdone")
            q("s_mov_b64 exec, 0xffff")
        q(f"s_add_u32 m0, s25, {4096*k}")
        q(f"s_add_u32 s22, s24, {4096*k}")
        q.v(f"buffer_load_dwordx4 v2, s[8:11], s22 offen lds","kx")
    q("s_mov_b64 exec, -1")
    q.label("B_kxdone")
    q("s_barrier")
    q(f"""v_mov_b32 v12, {LFLAG}
    v_mov_b32 v32, 0
    v_mov_b32 v33, 0""")
    q.d("ds_write_b64 v12, v[32:33]","z"); q.d("ds_write_b64 v12, v[32:33] offset:8","z"); q.d("ds_write_b64 v12, v[32:33] offset:16","z")
    q.vm=["ut"]
    conv_ut_stage(q)
    q.wait(vm="all", lg="all")
    q("s_barrier")
    st.take(q,1)
    conv_main(q, st)
    st.take(q,2)
    conv_finish(q, st, " sc1")
    st.take(q,3)
    q("s_waitcnt vmcnt(0)")
    st.take(q,4)
    lds_last(q, "B_conv_end", 4)
    q(f"""s_lshr_b32 s20, s66, 5
    s_lshl_b32 s20, s20, 5
    v_mov_b32 v12, s20
    v_mov_b32 v13, 1
    s_mov_b64 exec, 1
    global_atomic_add v12, v13, s[{P_DBG}:{P_DBG+1}] sc1
    s_mov_b64 exec, -1""")
    q.label("B_conv_end")
    st.take(q,5); st.take(q,6); st.flush(q,7,0x20000)
    lines=p.L+q.L+["B_exit:","    s_endpgm"]
    return kernel_text("kb_kernel", lines)

class Gemm2R:
    ACC=16
    def __init__(self, p, SC, nreg):
        self.p=p; self.SC=SC; self.pool=Pool(80,22); self.W={}; self.H={}; self.nd=0; self.nw=0; self.nh=0; self.nreg=nreg
    def setup(self):
        p=self.p
        srd(p, 36, P_WS, H_BYTES, H_OFF)
        srd(p, 40, P_WD, 1376*1024)
        p(f"""v_lshlrev_b32 v6, 4, v1
        s_and_b32 s20, s77, 1
        s_lshl_b32 s21, s78, 1
        s_add_u32 s21, s21, s20
        s_mul_i32 s22, s21, {86*1024}
        v_add_u32 v2, s22, v6
        s_xor_b32 s21, s21, 1
        s_mul_i32 s22, s21, {86*1024}
        v_add_u32 v3, s22, v6
        s_mul_i32 s23, s77, {RINGB}
        s_lshr_b32 s20, s77, 1
        s_add_u32 s23, s23, {SB[2]}
        v_lshrrev_b32 v7, 3, v1
        v_bfe_u32 v8, v1, 4, 1
        v_lshlrev_b32 v8, 2, v8
        v_and_b32 v4, 7, v1
        v_xor_b32 v4, v4, v8
        v_lshlrev_b32 v4, 4, v4
        v_lshl_add_u32 v4, v7, 10, v4
        s_lshl_b32 s21, s79, 7
        v_add_u32 v4, s21, v4
        v_lshrrev_b32 v7, 5, v1
        v_bfe_u32 v8, v1, 2, 2
        v_lshl_add_u32 v7, v7, 2, v8
        v_lshlrev_b32 v5, 7, v7
        v_bfe_u32 v7, v1, 3, 1
        v_xor_b32 v7, s20, v7
        v_lshl_add_u32 v5, v7, 6, v5
        v_and_b32 v7, 1, v1
        v_lshl_add_u32 v5, v7, 5, v5
        v_bfe_u32 v7, v1, 4, 1
        v_lshl_add_u32 v5, v7, 4, v5
        v_bfe_u32 v7, v1, 1, 1
        v_lshl_add_u32 v5, v7, 3, v5
        v_add_u32 v5, s23, v5
        v_xor_b32 v9, 64, v5""")
        p(f"""s_lshr_b32 s25, s63, 3
        s_lshl_b32 s25, s25, 1
        s_add_u32 s24, s79, s25
        s_mul_i32 s24, s24, 11
        s_lshr_b32 s24, s24, 2
        s_cmp_ge_u32 s24, {NSTEP}
        s_cselect_b32 s25, {NSTEP}, 0
        s_sub_u32 s24, s24, s25
        s_lshl_b32 s24, s24, 2
        s_add_u32 s24, s24, s77
        s_lshl_b32 s24, s24, 10
        s_mov_b32 s25, s24
        s_lshl_b32 s26, s77, 10""")
    def dma(self):
        p=self.p; s=self.nd; self.nd+=1
        p(f"s_lshl_b32 s27, s24, 4")
        p(f"s_add_u32 m0, s23, {(s%NRING)*2048}")
        p.v(f"buffer_load_dwordx4 v4, s[40:43], s27 offen lds",("d",s))
        p(f"s_add_u32 s27, s27, 8192")
        p(f"s_add_u32 m0, s23, {(s%NRING)*2048+1024}")
        p.v(f"buffer_load_dwordx4 v4, s[40:43], s27 offen lds",("d",s))
        adv(p,24)
    def ldw(self):
        p=self.p; s=self.nw; r=self.pool.get(); self.W[s]=r; self.nw+=1
        p.wait(vm=[("d",s)])
        for dz in range(2):
            for half in range(2):
                p.d(f"ds_read_b64_tr_b16 {vr(r+4*dz+2*half,2)}, v{(5,9)[dz]} offset:{(s%NRING)*2048+half*1024}",("w",s))
    def preload(self, ls=None):
        p=self.p
        while self.nd<NRING: self.dma()
        for s in range(self.nreg):
            self.ldw()
            if ls and s%3==0: ls.take(p,f"w{s}")
            if s>=1 and self.nd<NSTEP:
                p.wait(lg=[("w",s-1)])
                self.dma()
        p.wait(lg="all")
        while self.nd<NSTEP: self.dma()
    def ldh(self):
        p=self.p; s=self.nh; r=self.pool.get(); self.H[s]=r; self.nh+=1
        p(f"s_min_u32 s27, s25, {85*1024}")
        p.v(f"buffer_load_dwordx4 {vr(r,4)}, v2, s[36:39], s27 offen{self.SC}",("h",s))
        p.v(f"buffer_load_dwordx4 {vr(r+4,4)}, v3, s[36:39], s27 offen{self.SC}",("h",s))
        adv(p,25)
    def run(self, late=None, depth=99):
        p=self.p
        for s in range(NSTEP):
            p.wait(vm=[("h",s)], lg=[("w",s)])
            w,h=self.W[s],self.H[s]
            for dz in range(2):
                for mz in range(2):
                    a=self.ACC+16*(2*dz+mz)
                    p(f"v_mfma_f32_32x32x16_bf16 {vr(a,16)}, {vr(w+4*dz,4)}, {vr(h+4*mz,4)}, {'0' if s==0 else vr(a,16)}")
            self.pool.put(w); self.pool.put(h)
            for _ in range(2):
                if self.nh<min(NSTEP,s+1+depth): self.ldh()
            if self.nw<NSTEP and self.nw<=s+3: self.ldw()
            if late: late(s)
```

```python
from kb import *
FLG_OFF = 0x1120000
F_EPOCH, F_U = 0, 128
F_H = F_U + 8*16*128
F_Y = F_H + 32*32*128
FLG_BYTES = F_Y + 16*64*128
LNONCE = LFLAG + 32
LCNT_H, LCNT_Y, LCNT_U, LCNT_X = LFLAG+16, LFLAG+20, LFLAG+24, LFLAG+28
PGA, PTID = 210, 219
SC=" sc1"
SCH=os.environ.get('SCH',' sc1')
NW0 = 17
PFS = int(os.environ.get('PFS','5'))
DEPTH = int(os.environ.get("DEPTH","7"))
YPOLL = int(os.environ.get("YPOLL","15"))
YCHK  = int(os.environ.get("YCHK","18"))

def flag_srd(p, d): srd(p, d, P_WS, FLG_BYTES, FLG_OFF)

def bound(p, lbl):
    p(f"""s_sub_u32 s101, s101, 1
    s_cmp_lt_i32 s101, 0
    s_cbranch_scc1 {lbl}""")

def signal(p, cnt_addr, nwaves, soff_code, soff2=None):
    u=p.uid()
    p(f"""v_mov_b32 v12, {cnt_addr}
    v_mov_b32 v14, 1
    s_mov_b64 exec, 1
    ds_add_rtn_u32 v13, v12, v14
    ds_read_b64 v[10:11], v12 offset:{LNONCE-cnt_addr}
    s_waitcnt lgkmcnt(0)
    v_readfirstlane_b32 s24, v13
    s_cmp_lg_u32 s24, {nwaves-1}
    s_cbranch_scc1 sig{u}""")
    p(soff_code)
    flag_srd(p, 28)
    p(f"""v_mov_b32 v12, 0
    buffer_store_dwordx2 v[10:11], v12, s[28:31], s20 offen sc1""")
    if soff2:
        p(soff2.replace("SKIP",f"sig{u}"))
        p("buffer_store_dwordx2 v[10:11], v12, s[28:31], s20 offen sc1")
    p.label(f"sig{u}")
    p("s_mov_b64 exec, -1")

def signal1(p, soff_code):
    p(soff_code)
    p("""v_mov_b32 v10, s18
    v_mov_b32 v11, s19
    v_mov_b32 v12, 0
    s_mov_b64 exec, 1
    buffer_store_dwordx2 v[10:11], v12, s[28:31], s22 offen sc1
    s_mov_b64 exec, -1""")

def tag_publish(p):
    u=p.uid()
    p(f"""s_lshl_b32 s20, s2, 3
    s_add_u32 s20, s20, s3
    s_cmp_lg_u32 s20, {198*8+4}
    s_cbranch_scc1 notag{u}""")
    flag_srd(p, 28)
    p(f"""v_mov_b32 v2, 0
    s_mov_b64 exec, 1
    buffer_load_dwordx2 v[4:5], v2, s[28:31], 0 offen sc1
    s_waitcnt vmcnt(0)
    v_add_co_u32 v4, vcc, 1, v4
    v_addc_co_u32 v5, vcc, 0, v5, vcc
    v_or_b32 v5, 0x40000000, v5
    global_store_dwordx2 v2, v[4:5], s[{P_DBG}:{P_DBG+1}] sc1
    buffer_store_dwordx2 v[4:5], v2, s[28:31], 0 offen sc1
    s_waitcnt vmcnt(0)
    s_mov_b64 exec, -1""")
    p.label(f"notag{u}")

def tag_fetch(p):
    u=p.uid()
    p.label(f"tag{u}")
    p(f"""v_readfirstlane_b32 s19, v5
    s_cmp_lg_u32 s19, 0
    s_cbranch_scc1 tagok{u}""")
    bound(p, f"tagok{u}")
    p(f"""s_sleep 4
    global_load_dwordx2 v[4:5], v2, s[{P_DBG}:{P_DBG+1}] sc1
    s_waitcnt vmcnt(0)
    s_branch tag{u}
tagok{u}:
    v_mov_b32 v3, {LNONCE}
    ds_write_b64 v3, v[4:5]
    s_waitcnt lgkmcnt(0)""")

def tag_from_lds(p):
    p(f"""v_mov_b32 v12, {LNONCE}
    ds_read_b64 v[10:11], v12
    s_waitcnt lgkmcnt(0)
    v_readfirstlane_b32 s18, v10
    v_readfirstlane_b32 s19, v11""")

def wd_prefetch(p):
    srd(p, 28, P_WD, 1376*1024)
    p(f"""s_and_b32 s20, s77, 1
    s_mul_i32 s20, s20, 192
    v_add_u32 v44, s20, v1
    v_lshlrev_b32 v44, 7, v44
    s_mul_i32 s20, s63, {43*1024}
    v_min_u32 v45, {343*128}, v44""")
    for k in range(3):
        if k: p(f"v_add_u32 v44, {64*128}, v44"); p(f"v_min_u32 v45, {343*128}, v44")
        p.v(f"buffer_load_dword v47, v45, s[28:31], s20 offen","pf")

def side_ut(p, s):
    u=p.uid()
    TR=48
    p(f"""s_lshr_b32 s20, s65, 2
    s_cmp_lg_u32 s20, {s}
    s_cbranch_scc1 A_nout{u}
    v_lshrrev_b32 v44, 4, v1
    v_bfe_u32 v45, v1, 2, 2
    v_bfe_u32 v46, v1, 1, 1
    v_lshlrev_b32 v44, 4, v44
    v_lshl_add_u32 v44, v46, 3, v44
    v_add_u32 v44, v44, v45
    v_bfe_u32 v45, v44, 1, 3
    v_lshlrev_b32 v44, 7, v44
    v_lshl_add_u32 v44, v45, 4, v44
    v_and_b32 v45, 1, v1
    v_lshl_add_u32 v44, v45, 3, v44
    s_and_b32 s20, s77, 1
    s_lshl_b32 s21, s20, 13
    s_add_u32 s21, s21, {SB[s%3]+XO}
    v_add_u32 v44, s21, v44""")
    for cg in range(8):
        for half in range(2):
            p(f"v_xor_b32 v{186+(2*cg+half)%4}, {(cg<<4)^(half*32)}, v44")
            p(f"ds_read_b64_tr_b16 {vr(TR+4*cg+2*half,2)}, v{186+(2*cg+half)%4} offset:{half*512}")
    srd(p, 28, P_WS, 512*4096, UT_OFF)
    p(f"""v_and_b32 v45, 7, v1
    v_lshlrev_b32 v45, 12, v45
    v_lshrrev_b32 v46, 3, v1
    v_lshl_add_u32 v45, v46, 4, v45
    s_lshl_b32 s20, s20, 7
    s_lshl_b32 s21, s64, 8
    s_add_u32 s20, s20, s21
    s_add_u32 s21, s76, {s}
    s_and_b32 s21, s21, 7
    s_lshl_b32 s21, s21, 18
    s_add_u32 s20, s20, s21
    s_waitcnt lgkmcnt(0)""")
    for cg in range(8):
        p(f"buffer_store_dwordx4 {vr(TR+4*cg,4)}, v45, s[28:31], s20 offen sc1")
        if cg<7: p(f"s_add_u32 s20, s20, {8*4096}")
    p.label(f"A_nout{u}")

def early_check(p):
    u=p.uid()
    p(f"s_waitcnt vmcnt({2*NRING})")
    p.label(f"chk{u}")
    p(f"""v_cmp_ne_u64 vcc, s[18:19], v[22:23]
    s_and_b32 s20, vcc_lo, 0xffff
    s_cbranch_scc0 ok{u}""")
    bound(p, f"ok{u}")
    p(f"""s_sleep 8
    buffer_load_dwordx2 v[22:23], v15, s[28:31], s17 offen sc1
    s_waitcnt vmcnt(0)
    s_branch chk{u}""")
    p.label(f"ok{u}")

def lds_wait(p, addr, val):
    u=p.uid()
    p(f"v_mov_b32 v12, {addr}")
    p.label(f"lw{u}")
    p(f"""ds_read_b32 v13, v12
    s_waitcnt lgkmcnt(0)
    v_readfirstlane_b32 s22, v13
    s_cmp_ge_u32 s22, {val}
    s_cbranch_scc1 lwok{u}""")
    bound(p, f"lwok{u}")
    p(f"s_branch lw{u}")
    p.label(f"lwok{u}")

def lds_inc(p, addr):
    p(f"""s_mov_b64 exec, 1
    v_mov_b32 v12, {addr}
    v_mov_b32 v13, 1
    ds_add_u32 v12, v13
    s_mov_b64 exec, -1""")

def f_helper(p, st, ls):
    p.label("A_helper")
    ls.take(p,"entry")
    p.vm=["kp"]*5
    loader_srds(p)
    p(f"""v_mov_b32 v2, {LFLAG}
    v_mov_b32 v4, 0
    v_mov_b32 v5, 0""")
    for k in range(4): p.d(f"ds_write_b64 v2, v[4:5] offset:{8*k}","z")
    p("s_lshl_b32 s26, s77, 1")
    loader_setup(p, 26, 236, 240, 72, 73)
    p("s_add_u32 s26, s26, 1")
    loader_setup(p, 26, 244, 248, 16, 17)
    p(f"s_mul_i32 s23, s77, {TBL}")
    sets=((236,240,72,73),(244,248,16,17))
    kgen_compute(p, 23, None, None)
    ls.take(p,"kgen")
    kb_decode(p)
    p("""s_cmp_ge_u32 s77, 2
    s_cbranch_scc1 A_side""")
    n0=ls.n
    p("s_cmp_eq_u32 s65, 15")
    p("s_cbranch_scc1 A_noload")
    for s in range(NST):
        if s>=2: p.wait(vm=[("st",s)])
        ls.take(p,f"pre{s}")
        p("s_barrier")
        ls.take(p,f"B{s}")
        if s+2<NST: ka_issue(p, s+2, sets)
        if s==PFS: wd_prefetch(p)
        if s==5: g=Gemm2R(p,SC,NW0); g.setup()
        if s==6:
            for _ in range(NRING): g.dma()
    p("s_branch A_gemm2")
    p.label("A_noload")
    wd_prefetch(p)
    for s in range(NST): p("s_barrier")
    g=Gemm2R(p,SC,NW0); g.setup()
    for _ in range(NRING): g.dma()
    p("s_branch A_gemm2")
    n1=ls.n
    p.label("A_side")
    ls.n=n0
    p.vm.clear()
    p("v_mov_b32 v2, 0")
    p(f"global_load_dwordx2 v[4:5], v2, s[{P_DBG}:{P_DBG+1}] sc1")
    for s in range(NST):
        ls.take2(p)
        p("s_barrier")
        ls.take2(p)
        if s<2: side_ut(p, s)
        if s==2:
            p("s_waitcnt vmcnt(0)")
            tag_fetch(p)
            u=p.uid()
            p(f"""s_cmp_ge_u32 s65, 8
            s_cbranch_scc1 nosig{u}""")
            signal(p, LCNT_U, 2, f"""s_lshr_b32 s20, s65, 2
            s_add_u32 s20, s20, s76
            s_and_b32 s20, s20, 7
            s_lshl_b32 s20, s20, 11
            s_lshl_b32 s21, s64, 7
            s_add_u32 s20, s20, s21
            s_add_u32 s20, s20, {F_U}""")
            p.label(f"nosig{u}")
        if s==6:
            tag_from_lds(p)
            flag_srd(p, 28)
            p(f"""v_and_b32 v15, 15, v1
            v_lshlrev_b32 v15, 7, v15
            s_lshr_b32 s17, s66, 5
            s_lshl_b32 s17, s17, 11
            s_add_u32 s17, s17, {F_U}""")
            u=p.uid()
            p(f"""s_cmp_lg_u32 s65, 15
            s_cbranch_scc1 nopause{u}
            s_sleep 100""")
            p.label(f"nopause{u}")
            p("buffer_load_dwordx2 v[22:23], v15, s[28:31], s17 offen sc1")
            p.vm.clear()
            for _ in range(NRING): g.dma()
        if s==4: g=Gemm2R(p,SC,NW0); g.setup()
    early_check(p)
    srd(p, 12, P_WS, 512*4096, UT_OFF)
    p(f"""s_lshl_b32 s20, s66, 1
    s_and_b32 s21, s77, 1
    s_add_u32 s20, s20, s21
    s_lshl_b32 s20, s20, 12""")
    p.lg.clear()
    for k in range(4):
        p.v(f"buffer_load_dwordx4 {vr(64+4*k,4)}, v6, s[12:15], s20 offen offset:{1024*k}{SC}","ut")
    p(f"""s_and_b32 s21, s77, 1
    s_mul_i32 s20, s21, {UTW}
    s_add_u32 s20, s20, {UTL}
    v_add_u32 v7, s20, v6
    v_mov_b32 v16, 0
    v_mov_b32 v17, 0
    v_mov_b32 v18, 0
    v_mov_b32 v19, 0""")
    p.d("ds_write_b128 v7, v[16:19]","z")
    p.wait(vm="ut")
    for k in range(4): p.d(f"ds_write_b128 v7, {vr(64+4*k,4)} offset:{480+1024*k}","z")
    p.wait(lg="all")
    lds_inc(p, LCNT_X)
    ls.n=n1
    p.label("A_gemm2")
    p.vm=[("d",s) for s in range(NRING) for _ in range(2)]
    ls.take(p,'g2in')
    g.preload(ls)
    ls.take(p,"wiss")
    tag_from_lds(p)
    flag_srd(p, 28)
    p(f"""v_lshlrev_b32 v15, 7, v1
    v_min_u32 v17, {29*128}, v15
    s_lshl_b32 s16, s78, 12
    s_add_u32 s16, s16, {F_H}
    s_lshl_b32 s17, s79, 1
    s_lshr_b32 s20, s78, 4
    s_add_u32 s17, s17, s20
    s_lshl_b32 s17, s17, 13
    s_add_u32 s17, s17, {F_Y}""")
    srd(p, 12, P_U, 2048*1024)
    srd(p, 8, P_DSK, 1024)
    p(f"""v_and_b32 v8, 31, v1
    v_lshrrev_b32 v14, 5, v1
    s_lshl_b32 s20, s78, 1
    s_and_b32 s21, s77, 1
    s_add_u32 s20, s20, s21
    s_lshl_b32 s20, s20, 5
    v_add_u32 v10, s20, v8
    s_lshl_b32 s21, s79, 1
    s_lshr_b32 s22, s77, 1
    s_add_u32 s21, s21, s22
    s_lshl_b32 s22, s21, 17
    s_lshl_b32 s21, s21, 6
    v_lshl_add_u32 v11, v14, 5, s21
    v_lshl_add_u32 v7, v10, 10, v11
    v_lshlrev_b32 v10, 2, v10
    s_lshl_b32 s20, s20, 1
    s_add_u32 s22, s22, s20
    v_lshrrev_b32 v12, 2, v1
    v_lshlrev_b32 v12, 12, v12
    v_and_b32 v13, 3, v1
    v_lshl_add_u32 v12, v13, 4, v12
    v_add_u32 v12, s22, v12
    s_lshl_b32 s20, s77, 11
    s_add_u32 s20, s20, {YS}
    v_add_u32 v8, s20, v6
    v_lshlrev_b32 v13, 3, v13
    v_bfe_u32 v16, v1, 4, 1
    v_lshl_add_u32 v13, v16, 5, v13
    v_bfe_u32 v16, v1, 2, 2
    v_lshl_add_u32 v16, v14, 4, v16
    v_lshl_add_u32 v13, v16, 6, v13
    v_add_u32 v13, s20, v13""")
    ls.take(p,"spill")
    u=p.uid()
    p.label(f"ph{u}")
    p(f"""s_mov_b64 exec, 0x3fffffff
    buffer_load_dwordx2 v[20:21], v17, s[28:31], s16 offen sc1
    s_waitcnt vmcnt(0)
    v_cmp_ne_u64 vcc, s[18:19], v[20:21]
    s_mov_b64 exec, -1
    s_cbranch_vccz phok{u}""")
    bound(p, f"phok{u}")
    p(f"""s_sleep 2
    s_branch ph{u}
phok{u}:""")
    p.vm.clear()
    ls.take(p,"hflag")
    while g.pool.free: g.ldh()
    R={}
    def late(s):
        if s==3:
            R["x"]=g.pool.get(); R["d"]=g.pool.get()
            for k in range(2):
                p.v(f"buffer_load_dwordx4 {vr(R['x']+4*k,4)}, v7, s[12:15], 0 offen offset:{16*k}","e")
                p.v(f"buffer_load_dwordx4 {vr(R['d']+4*k,4)}, v11, s[8:11], 0 offen offset:{16*k}","e")
        if s==12:
            a=g.pool.get(); b=g.pool.get(); R["t"]=[a,b]; c=g.pool.get()
            p.wait(vm="e")
            for k in range(8):
                t=R["t"][k//4]+2*(k%4)
                p(f"v_lshlrev_b32 v{t}, 16, v{R['x']+k}")
                p(f"v_and_b32 v{t+1}, 0xffff0000, v{R['x']+k}")
                p(f"v_lshlrev_b32 v{c}, 16, v{R['d']+k}")
                p(f"v_and_b32 v{c+1}, 0xffff0000, v{R['d']+k}")
                p(f"v_pk_mul_f32 {vr(t,2)}, {vr(t,2)}, {vr(c,2)}")
            R["g"]=c; R["y"]=R["x"]; g.pool.put(R["d"])
            srd(p, 12, P_WS, 512*4096, YT_OFF)
            srd(p, 8, P_WS, 8192, G_OFF)
            p.v(f"buffer_load_dword v{c}, v10, s[8:11], 0 offen{SC}","g")
        if s==YPOLL:
            p.v(f"buffer_load_dwordx2 {vr(R['g']+4,2)}, v15, s[28:31], s17 offen sc1","py")
        if s==YCHK:
            u=p.uid(); q=vr(R['g']+4,2)
            p.wait(vm="py")
            p.label(f"py{u}")
            p(f"""v_cmp_ne_u64 vcc, s[18:19], {q}
            s_cbranch_vccz pyok{u}""")
            bound(p, f"pyok{u}")
            p(f"""s_sleep 2
            buffer_load_dwordx2 {q}, v15, s[28:31], s17 offen sc1
            s_waitcnt vmcnt(0)
            s_branch py{u}
pyok{u}:""")
            ls.take(p,"yflag")
            p(f"s_mov_b32 s20, {16*4096}")
            p.v(f"buffer_load_dwordx4 {vr(R['y'],4)}, v12, s[12:15], 0 offen{SC}","y")
            p.v(f"buffer_load_dwordx4 {vr(R['y']+4,4)}, v12, s[12:15], s20 offen{SC}","y")
        if s in (0,10,21): ls.take(p,f"g{s}")
    g.run(late=late, depth=DEPTH)
    ACC=16
    p("v_mov_b32 v2, v12"); p("v_mov_b32 v3, v13")
    lds_wait(p, LCNT_X, 6)
    p("v_mov_b32 v12, v2"); p("v_mov_b32 v13, v3")
    for z in range(1,4):
        p(f"""s_xor_b32 s20, s77, {z}
        s_mul_i32 s21, s20, 12288
        s_cmp_eq_u32 s20, 3
        s_cselect_b32 s21, {RED3-RED}, s21
        s_add_u32 s21, s21, {RED+(z-1)*4096}
        v_add_u32 v{1+z}, s21, v6""")
    for z in range(1,4):
        for k in range(4):
            p.d(f"ds_write_b128 v{1+z}, {vr(ACC+16*z+4*k,4)} offset:{1024*k}","pw")
    p(f"""s_mul_i32 s20, s77, 12288
    s_cmp_eq_u32 s77, 3
    s_cselect_b32 s20, {RED3-RED}, s20
    s_add_u32 s20, s20, {RED}
    v_add_u32 v14, s20, v6""")
    srd(p, 8, P_OUT, 2048*1024)
    G0=R["g"]; Y=R["y"]
    p.wait(vm="all")
    p.d(f"ds_write_b128 v8, {vr(Y,4)}","y")
    p.d(f"ds_write_b128 v8, {vr(Y+4,4)} offset:1024","y")
    for j in range(4): p.d(f"ds_read_b64_tr_b16 {vr(Y+2*j,2)}, v13 offset:{256*j}","yt")
    p(f"v_mov_b32 v{G0+1}, v{G0}")
    p(f"v_sub_f32 v{G0+2}, 1.0, v{G0}")
    p(f"v_sub_f32 v{G0+3}, 1.0, v{G0}")
    p.wait(lg="all")
    ls.take(p,"pw")
    p("s_barrier")
    ls.take(p,"bar")
    free=[r for r in g.pool.free]
    T=[free[i] for i in range(6)]; A=[free[6],free[7]]
    for z in range(3):
        for k in range(4):
            p.d(f"ds_read_b128 {vr(T[2*z+k//2]+4*(k%2),4)}, v14 offset:{4096*z+1024*k}",("r",z))
    pa=lambda L,k: vr(L[k//4]+2*(k%4),2)
    for k in range(8):
        a=A[k//4]+2*(k%4)
        p(f"v_lshlrev_b32 v{a}, 16, v{Y+k}")
        p(f"v_and_b32 v{a+1}, 0xffff0000, v{Y+k}")
    for k in range(8): p(f"v_pk_add_f32 {pa(A,k)}, {pa(A,k)}, {pa(R['t'],k)}")
    for k in range(8): p(f"v_pk_mul_f32 {pa(A,k)}, {pa(A,k)}, {vr(G0,2)}")
    for z in range(3):
        p.wait(lg=[("r",z)])
        for k in range(8): p(f"v_pk_add_f32 {vr(ACC+2*k,2)}, {vr(ACC+2*k,2)}, {pa(T[2*z:2*z+2],k)}")
    for k in range(8): p(f"v_pk_fma_f32 {pa(A,k)}, {vr(ACC+2*k,2)}, {vr(G0+2,2)}, {pa(A,k)}")
    for k in range(8): p(f"v_cvt_pk_bf16_f32 v{32+k}, v{A[k//4]+2*(k%4)}, v{A[k//4]+2*(k%4)+1}")
    for k in range(2):
        p(f"buffer_store_dwordx4 {vr(32+4*k,4)}, v7, s[8:11], 0 offen offset:{16*k}")
    ls.take(p,"st")
    if ls.on:
        p("s_waitcnt vmcnt(0)")
        ls.take(p,"end"); ls.flush(p,0x40000)
    p("s_endpgm")

def f_post(p, st):
    p.label("A_post")
    p(f"v_lshlrev_b32 v18, 4, v{PTID}")
    def emit(ch,Q,Pp):
        p.d(f"ds_write_b128 v18, {vr(Q,4)} offset:{KXL+ch*KX_CH}","kx")
        p.d(f"ds_write_b128 v18, {vr(Pp,4)} offset:{KXL+ch*KX_CH+KXP_OFF}","kx")
    expand_run2(p, PGA, PTID, 20, emit)
    p(f"""v_lshrrev_b32 v19, 2, v1
    v_mul_u32_u24 v19, {KXP_OFF}, v19
    v_and_b32 v16, 3, v1
    v_lshl_add_u32 v19, v16, 4, v19
    v_mov_b32 v88, 0
    v_mov_b32 v89, 0
    v_mov_b32 v90, 0
    v_mov_b32 v91, 0
    s_mov_b64 exec, 0xffff""")
    p.d(f"ds_write_b128 v19, v[88:91] offset:{KXL+4096}","kx")
    p(f"""s_mov_b64 exec, 1
    v_mov_b32 v12, {LCNT_X}
    v_mov_b32 v14, 1""")
    p.wait(lg="all")
    p("ds_add_u32 v12, v14")
    p("s_mov_b64 exec, -1")
    tag_from_lds(p)
    flag_srd(p, 28)
    conv_setup(p, shared=True)
    p(f"""s_lshl_b32 s22, s64, 1
    s_and_b32 s23, s77, 1
    s_add_u32 s22, s22, s23
    s_lshl_b32 s22, s22, 4
    s_add_u32 s22, s22, s65
    s_lshl_b32 s22, s22, 1
    s_add_u32 s22, s22, s20
    s_lshl_b32 s22, s22, 7
    s_add_u32 s22, s22, {F_H}""")
    p("s_waitcnt vmcnt(0)")
    st.take(p,4)
    signal1(p, "s_nop 0")
    lds_wait(p, LCNT_X, 6)
    p.lg.clear()
    conv_main(p, st)
    st.take(p,5)
    conv_finish(p, st, SC)
    p("s_waitcnt vmcnt(0)")
    st.take(p,6)
    signal1(p, f"""s_lshr_b32 s22, s66, 5
    s_lshl_b32 s22, s22, 1
    s_add_u32 s22, s22, s21
    s_lshl_b32 s22, s22, 5
    s_and_b32 s23, s66, 31
    s_add_u32 s22, s22, s23
    s_lshl_b32 s22, s22, 1
    s_add_u32 s22, s22, s20
    s_lshl_b32 s22, s22, 7
    s_add_u32 s22, s22, {F_Y}""")
    st.take(p,7); st.flush(p,8,0)
    p("s_endpgm")

def build_kf(name, stamps=False):
    st=Stamps(stamps)
    ls=LaneStamps(bool(stamps)); build_kf.ls=ls
    class Sel:
        def __init__(s, m): s.m=m
        def take(s,p,k):
            if k in s.m: st.take(p,s.m[k])
    p=Prog()
    ka_prologue(p, st)
    p("s_mov_b32 s101, 0x8000")
    loader_setup(p)
    kgen_loads(p)
    p("""s_waitcnt lgkmcnt(0)
    s_cmp_lt_u32 s3, 4
    s_cbranch_scc1 A_front""")
    tag_publish(p)
    kgen_issue(p)
    p("s_barrier")
    p("s_branch A_helper")
    p.label("A_front")
    p("s_barrier")
    p("""s_cmp_eq_u32 s65, 15
    s_cbranch_scc1 A_idle""")
    ka_front(p, st)
    p(f"v_mov_b32 v{PTID}, v0")
    expand_index(p, PGA, PTID, 20, KSC)
    p("""s_add_u32 s20, s65, s68
    s_cmp_eq_u32 s20, 15
    s_cbranch_scc1 A_gate""")
    c=Prog(); ka_compute(c, Sel({2:1,4:2,5:3}), SCH)
    post=Prog(); f_post(post, st)
    g=Prog(); ka_gate(g, Sel({5:3}), SC); g("s_branch A_post")
    w=Prog(); w.label("A_idle")
    w(f"v_mov_b32 v{PTID}, v0")
    expand_index(w, PGA, PTID, 20, KSC)
    for _ in range(8): w("s_barrier")
    w("s_branch A_post")
    h=Prog(); f_helper(h, st, ls)
    lines=p.L+c.L+post.L+g.L+w.L+h.L+["A_exit:","    s_endpgm","ka_end:"]
    return kernel_text(name, lines)
```

```python
from common import *
import struct
def f32(x): return "0x%08x"%struct.unpack("<I",struct.pack("<f",x))[0]
LOG2E = 1.4426950408889634
L_HI = struct.unpack("<f",struct.pack("<f",LOG2E))[0]
L_LO = LOG2E - L_HI
ROWP = 272
TBL  = 16*ROWP
PART_BYTES = 16*48*4

def cmul(p, d, x, s, t):
    return [f"v_pk_mul_f32 {vr(t,2)}, {vr(x,2)}, {vr(s,2)} op_sel:[0,0] op_sel_hi:[1,0]",
            f"v_pk_fma_f32 {vr(d,2)}, {vr(x,2)}, {vr(s,2)}, {vr(t,2)} op_sel:[1,1,0] op_sel_hi:[0,1,1] neg_lo:[1,0,0]"]

def cmul_batch(p, items):
    A=[cmul(p,d,x,s,d) for d,x,s in items]
    for a in A: p(a[0])
    for a in A: p(a[1])

def kgen_loads(p):
    p(f"""s_lshl_b32 s20, s66, 9
    s_lshl_b32 s21, s77, 7
    s_add_u32 s20, s20, s21
    s_lshr_b32 s21, s20, 8
    s_lshl_b32 s21, s21, 1
    v_lshl_add_u32 v9, v1, 1, s20
    v_mov_b32 v8, s21""")

def kgen_issue(p):
    for j,ptr in enumerate((P_LOGA,P_AIM,P_CR,P_CI)):
        p.v(f"global_load_ushort v{10+j}, v9, s[{ptr}:{ptr+1}]","kp")
    p.v(f"global_load_ushort v14, v8, s[{P_LDT}:{P_LDT+1}]","kp")

def exp_rbf(p, d, x, t):
    p(f"""v_mul_f32 v{t}, {f32(L_HI)}, v{x}
    v_fma_f32 v{t+1}, v{x}, s22, -v{t}
    v_fmac_f32 v{t+1}, {f32(L_LO)}, v{x}
    v_exp_f32 v{t}, v{t}
    v_mul_f32 v{t+1}, {f32(0.6931471805599453)}, v{t+1}
    v_fmac_f32 v{t}, v{t}, v{t+1}
    v_cvt_pk_bf16_f32 v{t}, v{t}, v{t}
    v_and_b32 v{d}, 0xffff0000, v{t}""")

def kgen_compute(p, lds_tbl, split=None, st=None):
    S1,S8,S128,S256,S512,S1024,S2,S4 = 20,22,24,26,28,30,32,34
    B,A0,A1,A2 = 48,80,112,144
    PK=170; BF=192; AF=208; D=224
    def sp(k):
        if split: split(k)
        p(f"s_mov_b32 m0, s{lds_tbl}")
    p(f"""v_and_b32 v5, 15, v1
    v_lshrrev_b32 v6, 4, v1
    v_mul_u32_u24 v3, {ROWP}, v5
    v_lshl_add_u32 v3, v6, 4, v3
    v_add_u32 v3, s{lds_tbl}, v3
    s_mov_b32 s22, {f32(L_HI)}""")
    p(f"""v_lshrrev_b32 v7, 1, v6
    v_lshlrev_b32 v4, 9, v7
    v_lshl_add_u32 v4, v5, 5, v4
    v_and_b32 v16, 1, v6
    v_lshl_add_u32 v4, v16, 4, v4
    v_add_u32 v4, s{lds_tbl}, v4
    v_lshlrev_b32 v16, 8, v6
    v_sub_u32 v17, 4, v7
    v_lshlrev_b32 v17, v17, v5
    v_add3_u32 v17, v17, v16, s{lds_tbl}
    v_mul_u32_u24 v18, 120, v7
    v_add3_u32 v18, v18, v17, 8
    v_lshl_add_u32 v19, v5, 2, v16
    v_add_u32 v19, s{lds_tbl}, v19""")
    sp(0)
    p.wait(vm="kp")
    if st: st.take(p,1)
    for j in range(5): p(f"v_lshlrev_b32 v{10+j}, 16, v{10+j}")
    exp_rbf(p, 14, 14, 36)
    exp_rbf(p, 10, 10, 38)
    p(f"""v_mul_f32 v10, v10, v14
    v_mul_f32 v11, v11, v14
    v_add_f32 v14, v14, v14
    v_mul_f32 v10, {f32(-LOG2E)}, v10
    v_mul_f32 v11, 0.15915494, v11
    v_mul_f32 v{A0}, v12, v14
    v_mul_f32 v{A0+1}, v13, v14""")
    ev=[(S1,1.0),(S8,8.0),(S128,128.0)]
    for k,(S,pp) in enumerate(ev):
        if pp==1.0:
            p(f"v_mov_b32 v{36+2*k}, v10"); p(f"v_fract_f32 v{37+2*k}, v11")
        else:
            p(f"v_mul_f32 v{36+2*k}, {f32(pp)}, v10"); p(f"v_mul_f32 v{37+2*k}, {f32(pp)}, v11")
    for k in (1,2): p(f"v_fract_f32 v{37+2*k}, v{37+2*k}")
    for k,(S,pp) in enumerate(ev):
        p(f"v_exp_f32 v{36+2*k}, v{36+2*k}")
        p(f"v_cos_f32 v{S}, v{37+2*k}")
        p(f"v_sin_f32 v{S+1}, v{37+2*k}")
    for k,(S,pp) in enumerate(ev):
        p(f"v_pk_mul_f32 {vr(S,2)}, {vr(S,2)}, {vr(36+2*k,2)} op_sel:[0,0] op_sel_hi:[1,0]")
    b=lambda i:B+2*i; a0=lambda i:A0+2*i; a1=lambda i:A1+2*i; a2=lambda i:A2+2*i
    def put(rows, src, negim):
        for i in rows: p(f"v_cvt_pk_bf16_f32 v{PK+i}, v{src(i)}, {'-' if negim else ''}v{src(i)+1}")
        for i in rows: p.d(f"ds_write_addtid_b32 v{PK+i} offset:{i*ROWP}","w")
    def frags(R, tag):
        for s in range(4): p.d(f"ds_read_b128 {vr(R+4*s,4)}, v3 offset:{64*s}",tag)
    def mm(d):
        p.wait(lg="af")
        for s in range(4):
            p(f"v_mfma_f32_16x16x32_bf16 {vr(d,4)}, {vr(AF+4*s,4)}, {vr(BF+4*s,4)}, {'0' if s==0 else vr(d,4)}")
    p(f"v_mov_b32 v{b(0)}, 1.0"); p(f"v_mov_b32 v{b(0)+1}, 0")
    p(f"v_mov_b32 v{b(1)}, v{S8}"); p(f"v_mov_b32 v{b(1)+1}, v{S8+1}")
    cmul_batch(p, [(b(2),b(1),b(1)), (S2,S1,S1), (a0(1),a0(0),S1), (S256,S128,S128)])
    cmul_batch(p, [(b(3),b(2),b(1)), (b(4),b(2),b(2)), (S4,S2,S2), (a0(2),a0(0),S2), (a0(3),a0(1),S2), (S512,S256,S256)])
    cmul_batch(p, [(b(4+i),b(4),b(i)) for i in range(1,5)] + [(a0(4+i),a0(i),S4) for i in range(4)] + [(S1024,S512,S512)])
    cmul_batch(p, [(b(8+i),b(8),b(i)) for i in range(1,8)])
    put(range(16), b, True)
    frags(BF,"bf")
    cmul_batch(p, [(a0(8+i),a0(i),S128) for i in range(8)])
    put(range(16), a0, False)
    frags(AF,"af")
    sp(1)
    cmul_batch(p, [(a1(4*i+e),a0(8*i+2*e),S256) for i in range(2) for e in range(4)])
    cmul_batch(p, [(a1(8+2*i+e),a0(8*i+4*e),S512) for i in range(2) for e in range(2)] +
                  [(a1(8+2*i+e),a1(4*(i-2)+2*e),S512) for i in range(2,4) for e in range(2)])
    mm(D)
    put(range(16), a1, False)
    frags(AF,"af")
    sp(2)
    src=[a0(0),a0(8),a1(0),a1(4),a1(8),a1(10),a1(12),a1(14)]
    cmul_batch(p, [(a2(i),src[i],S1024) for i in range(8)])
    cmul_batch(p, [(a2(8),a2(0),S1024)])
    mm(D+4)
    put(range(9), a2, False)
    frags(AF,"af")
    mm(D+8)
    p.d(f"ds_write_b128 v4, {vr(D,4)}","pw")
    p.d(f"ds_write_b64 v17, {vr(D+4,2)} offset:1024","pw")
    p.d(f"ds_write_b64 v18, {vr(D+6,2)} offset:1024","pw")
    for r in range(4):
        p.d(f"ds_write_b32 v19, v{D+8+r} offset:{2048+64*r}","pw")
    p.wait(lg="all")

KXP_OFF = 4160
def expand_index(p, GA, tid, t, part_base):
    p(f"v_lshlrev_b32 v{t}, 3, v{tid}")
    p(f"v_mov_b32 v{t+1}, 127")
    for e in range(9): p(f"v_sub_u32 v{GA+e}, {2047-e}, v{t}")
    for e in range(9): p(f"v_cvt_f32_i32 v{t+2+e}, v{GA+e}")
    for e in range(9): p(f"v_cvt_pk_bf16_f32 v{t+2+e}, v{t+2+e}, 0")
    for e in range(9): p(f"v_subrev_u32 v{t+2+e}, 17024, v{t+2+e}")
    for e in range(9): p(f"v_med3_i32 v{GA+e}, v{t+2+e}, v{GA+e}, v{t+1}")
    for e in range(9): p(f"v_lshlrev_b32 v{GA+e}, 2, v{GA+e}")
    if part_base:
        for e in range(9): p(f"v_add_u32 v{GA+e}, {part_base}, v{GA+e}")

def expand_run(p, GA, tid, T, emit, chs=(0,1)):
    for ch in chs:
        for e in range(9):
            p.d(f"ds_read2st64_b32 {vr(T+2*e,2)}, v{GA+e} offset0:{34*ch} offset1:{34*ch+17}",("g",ch))
    p(f"v_cmp_ne_u32 vcc, 0xff, v{tid}")
    for ch in chs:
        p.wait(lg=[("g",ch)])
        b=T
        for e in range(9): p(f"v_add_f32 v{b+2*e}, v{b+2*e}, v{b+2*e+1}")
        p(f"v_cndmask_b32 v{b+16}, 0, v{b+16}, vcc")
        O=T+18
        for k in range(4): p(f"v_cvt_pk_bf16_f32 v{O+4+k}, v{b+4*k}, v{b+4*k+2}")
        for k in range(4): p(f"v_cvt_pk_bf16_f32 v{O+k}, v{b+4*k+2}, v{b+4*k+4}")
        emit(ch, O, O+4)

def expand_run2(p, GA, tid, T, emit):
    for ch in range(2):
        for e in range(9):
            p.d(f"ds_read2st64_b32 {vr(T+18*ch+2*e,2)}, v{GA+e} offset0:{34*ch} offset1:{34*ch+17}",("g",ch))
    p(f"v_cmp_ne_u32 vcc, 0xff, v{tid}")
    for ch in range(2):
        p.wait(lg=[("g",ch)])
        b=T+18*ch
        for e in range(9): p(f"v_add_f32 v{b+2*e}, v{b+2*e}, v{b+2*e+1}")
        p(f"v_cndmask_b32 v{b+16}, 0, v{b+16}, vcc")
        O=T+36+8*ch
        for k in range(4): p(f"v_cvt_pk_bf16_f32 v{O+4+k}, v{b+4*k}, v{b+4*k+2}")
        for k in range(4): p(f"v_cvt_pk_bf16_f32 v{O+k}, v{b+4*k+2}, v{b+4*k+4}")
        emit(ch, O, O+4)
```

```python
import sys, os
from ka import *
HEAD = '.amdgcn_target "amdgcn-amd-amdhsa--gfx950"\n'
if __name__=="__main__":
    mode=sys.argv[1]; out=sys.argv[2]; stamps = sys.argv[3] if len(sys.argv)>3 else False
    if stamps=="rt": stamps=True
    if mode=="a":
        txt = f"; @launch kernel=ka_kernel grid=(256,1,1) block=(512,1,1) lds={LDS_A}\n"+HEAD+build_ka(stamps)
    elif mode=="ab":
        from kb import *
        txt = (f"; @launch kernel=ka_kernel grid=(256,1,1) block=(512,1,1) lds={LDS_A}\n"
               f"; @launch kernel=kb_kernel grid=(256,1,1) block=(512,1,1) lds={LDS_B}\n"+HEAD+build_ka(stamps)+build_kb(stamps))
    elif mode=="f":
        from kf import *
        NAME="gated_mix__ssm_conv_s4d__glu_gated_geglu__prompt_kernel"
        txt = f"; @launch grid=(256,1,1) block=(512,1,1) lds={LDS_A}\n"+HEAD+build_kf(NAME, stamps)
    if mode=="f" and stamps: txt += "; LSNAMES " + " ".join(build_kf.ls.names) + "\n"
    open(out,"w").write(txt)
```

```python
from kb import *
FLG_OFF = 0x1120000
F_EPOCH, F_U = 0, 128
F_H = F_U + 8*16*128
F_Y = F_H + 32*32*128
FLG_BYTES = F_Y + 16*64*128
LNONCE = LFLAG + 32
LCNT_H, LCNT_Y, LCNT_U, LCNT_X = LFLAG+16, LFLAG+20, LFLAG+24, LFLAG+28
PGA, PTID = 210, 219
SC=" sc1"
SCH=os.environ.get('SCH',' sc1')
NW0 = 17
PFS = int(os.environ.get('PFS','5'))
DEPTH = int(os.environ.get("DEPTH","7"))
YPOLL = int(os.environ.get("YPOLL","15"))
YCHK  = int(os.environ.get("YCHK","18"))

def flag_srd(p, d): srd(p, d, P_WS, FLG_BYTES, FLG_OFF)

def bound(p, lbl):
    p(f"""s_sub_u32 s101, s101, 1
    s_cmp_lt_i32 s101, 0
    s_cbranch_scc1 {lbl}""")

def signal(p, cnt_addr, nwaves, soff_code, soff2=None):
    u=p.uid()
    p(f"""v_mov_b32 v12, {cnt_addr}
    v_mov_b32 v14, 1
    s_mov_b64 exec, 1
    ds_add_rtn_u32 v13, v12, v14
    ds_read_b64 v[10:11], v12 offset:{LNONCE-cnt_addr}
    s_waitcnt lgkmcnt(0)
    v_readfirstlane_b32 s24, v13
    s_cmp_lg_u32 s24, {nwaves-1}
    s_cbranch_scc1 sig{u}""")
    p(soff_code)
    flag_srd(p, 28)
    p(f"""v_mov_b32 v12, 0
    buffer_store_dwordx2 v[10:11], v12, s[28:31], s20 offen sc1""")
    if soff2:
        p(soff2.replace("SKIP",f"sig{u}"))
        p("buffer_store_dwordx2 v[10:11], v12, s[28:31], s20 offen sc1")
    p.label(f"sig{u}")
    p("s_mov_b64 exec, -1")

def signal1(p, soff_code):
    p(soff_code)
    p("""v_mov_b32 v10, s18
    v_mov_b32 v11, s19
    v_mov_b32 v12, 0
    s_mov_b64 exec, 1
    buffer_store_dwordx2 v[10:11], v12, s[28:31], s22 offen sc1
    s_mov_b64 exec, -1""")

def tag_publish(p):
    u=p.uid()
    p(f"""s_lshl_b32 s20, s2, 3
    s_add_u32 s20, s20, s3
    s_cmp_lg_u32 s20, {198*8+4}
    s_cbranch_scc1 notag{u}""")
    flag_srd(p, 28)
    p(f"""v_mov_b32 v2, 0
    s_mov_b64 exec, 1
    buffer_load_dwordx2 v[4:5], v2, s[28:31], 0 offen sc1
    s_waitcnt vmcnt(0)
    v_add_co_u32 v4, vcc, 1, v4
    v_addc_co_u32 v5, vcc, 0, v5, vcc
    v_or_b32 v5, 0x40000000, v5
    global_store_dwordx2 v2, v[4:5], s[{P_DBG}:{P_DBG+1}] sc1
    buffer_store_dwordx2 v[4:5], v2, s[28:31], 0 offen sc1
    s_waitcnt vmcnt(0)
    s_mov_b64 exec, -1""")
    p.label(f"notag{u}")

def tag_fetch(p):
    u=p.uid()
    p.label(f"tag{u}")
    p(f"""v_readfirstlane_b32 s19, v5
    s_cmp_lg_u32 s19, 0
    s_cbranch_scc1 tagok{u}""")
    bound(p, f"tagok{u}")
    p(f"""s_sleep 4
    global_load_dwordx2 v[4:5], v2, s[{P_DBG}:{P_DBG+1}] sc1
    s_waitcnt vmcnt(0)
    s_branch tag{u}
tagok{u}:
    v_mov_b32 v3, {LNONCE}
    ds_write_b64 v3, v[4:5]
    s_waitcnt lgkmcnt(0)""")

def tag_from_lds(p):
    p(f"""v_mov_b32 v12, {LNONCE}
    ds_read_b64 v[10:11], v12
    s_waitcnt lgkmcnt(0)
    v_readfirstlane_b32 s18, v10
    v_readfirstlane_b32 s19, v11""")

def wd_prefetch(p):
    srd(p, 28, P_WD, 1376*1024)
    p(f"""s_and_b32 s20, s77, 1
    s_mul_i32 s20, s20, 192
    v_add_u32 v44, s20, v1
    v_lshlrev_b32 v44, 7, v44
    s_mul_i32 s20, s63, {43*1024}
    v_min_u32 v45, {343*128}, v44""")
    for k in range(3):
        if k: p(f"v_add_u32 v44, {64*128}, v44"); p(f"v_min_u32 v45, {343*128}, v44")
        p.v(f"buffer_load_dword v47, v45, s[28:31], s20 offen","pf")

def side_ut(p, s):
    u=p.uid()
    TR=48
    p(f"""s_lshr_b32 s20, s65, 2
    s_cmp_lg_u32 s20, {s}
    s_cbranch_scc1 A_nout{u}
    v_lshrrev_b32 v44, 4, v1
    v_bfe_u32 v45, v1, 2, 2
    v_bfe_u32 v46, v1, 1, 1
    v_lshlrev_b32 v44, 4, v44
    v_lshl_add_u32 v44, v46, 3, v44
    v_add_u32 v44, v44, v45
    v_bfe_u32 v45, v44, 1, 3
    v_lshlrev_b32 v44, 7, v44
    v_lshl_add_u32 v44, v45, 4, v44
    v_and_b32 v45, 1, v1
    v_lshl_add_u32 v44, v45, 3, v44
    s_and_b32 s20, s77, 1
    s_lshl_b32 s21, s20, 13
    s_add_u32 s21, s21, {SB[s%3]+XO}
    v_add_u32 v44, s21, v44""")
    for cg in range(8):
        for half in range(2):
            p(f"v_xor_b32 v{186+(2*cg+half)%4}, {(cg<<4)^(half*32)}, v44")
            p(f"ds_read_b64_tr_b16 {vr(TR+4*cg+2*half,2)}, v{186+(2*cg+half)%4} offset:{half*512}")
    srd(p, 28, P_WS, 512*4096, UT_OFF)
    p(f"""v_and_b32 v45, 7, v1
    v_lshlrev_b32 v45, 12, v45
    v_lshrrev_b32 v46, 3, v1
    v_lshl_add_u32 v45, v46, 4, v45
    s_lshl_b32 s20, s20, 7
    s_lshl_b32 s21, s64, 8
    s_add_u32 s20, s20, s21
    s_add_u32 s21, s76, {s}
    s_and_b32 s21, s21, 7
    s_lshl_b32 s21, s21, 18
    s_add_u32 s20, s20, s21
    s_waitcnt lgkmcnt(0)""")
    for cg in range(8):
        p(f"buffer_store_dwordx4 {vr(TR+4*cg,4)}, v45, s[28:31], s20 offen sc1")
        if cg<7: p(f"s_add_u32 s20, s20, {8*4096}")
    p.label(f"A_nout{u}")

def early_check(p):
    u=p.uid()
    p(f"s_waitcnt vmcnt({2*NRING})")
    p.label(f"chk{u}")
    p(f"""v_cmp_ne_u64 vcc, s[18:19], v[22:23]
    s_and_b32 s20, vcc_lo, 0xffff
    s_cbranch_scc0 ok{u}""")
    bound(p, f"ok{u}")
    p(f"""s_sleep 8
    buffer_load_dwordx2 v[22:23], v15, s[28:31], s17 offen sc1
    s_waitcnt vmcnt(0)
    s_branch chk{u}""")
    p.label(f"ok{u}")

def lds_wait(p, addr, val):
    u=p.uid()
    p(f"v_mov_b32 v12, {addr}")
    p.label(f"lw{u}")
    p(f"""ds_read_b32 v13, v12
    s_waitcnt lgkmcnt(0)
    v_readfirstlane_b32 s22, v13
    s_cmp_ge_u32 s22, {val}
    s_cbranch_scc1 lwok{u}""")
    bound(p, f"lwok{u}")
    p(f"s_branch lw{u}")
    p.label(f"lwok{u}")

def lds_inc(p, addr):
    p(f"""s_mov_b64 exec, 1
    v_mov_b32 v12, {addr}
    v_mov_b32 v13, 1
    ds_add_u32 v12, v13
    s_mov_b64 exec, -1""")

def f_helper(p, st, ls):
    p.label("A_helper")
    ls.take(p,"entry")
    p.vm=["kp"]*5
    loader_srds(p)
    p(f"""v_mov_b32 v2, {LFLAG}
    v_mov_b32 v4, 0
    v_mov_b32 v5, 0""")
    for k in range(4): p.d(f"ds_write_b64 v2, v[4:5] offset:{8*k}","z")
    p("s_lshl_b32 s26, s77, 1")
    loader_setup(p, 26, 236, 240, 72, 73)
    p("s_add_u32 s26, s26, 1")
    loader_setup(p, 26, 244, 248, 16, 17)
    p(f"s_mul_i32 s23, s77, {TBL}")
    sets=((236,240,72,73),(244,248,16,17))
    kgen_compute(p, 23, None, None)
    ls.take(p,"kgen")
    kb_decode(p)
    p("""s_cmp_ge_u32 s77, 2
    s_cbranch_scc1 A_side""")
    n0=ls.n
    p("s_cmp_eq_u32 s65, 15")
    p("s_cbranch_scc1 A_noload")
    for s in range(NST):
        if s>=2: p.wait(vm=[("st",s)])
        ls.take(p,f"pre{s}")
        p("s_barrier")
        ls.take(p,f"B{s}")
        if s+2<NST: ka_issue(p, s+2, sets)
        if s==PFS: wd_prefetch(p)
        if s==5: g=Gemm2R(p,SC,NW0); g.setup()
        if s==6:
            for _ in range(NRING): g.dma()
    p("s_branch A_gemm2")
    p.label("A_noload")
    wd_prefetch(p)
    for s in range(NST): p("s_barrier")
    g=Gemm2R(p,SC,NW0); g.setup()
    for _ in range(NRING): g.dma()
    p("s_branch A_gemm2")
    n1=ls.n
    p.label("A_side")
    ls.n=n0
    p.vm.clear()
    p("v_mov_b32 v2, 0")
    p(f"global_load_dwordx2 v[4:5], v2, s[{P_DBG}:{P_DBG+1}] sc1")
    for s in range(NST):
        ls.take2(p)
        p("s_barrier")
        ls.take2(p)
        if s<2: side_ut(p, s)
        if s==2:
            p("s_waitcnt vmcnt(0)")
            tag_fetch(p)
            u=p.uid()
            p(f"""s_cmp_ge_u32 s65, 8
            s_cbranch_scc1 nosig{u}""")
            signal(p, LCNT_U, 2, f"""s_lshr_b32 s20, s65, 2
            s_add_u32 s20, s20, s76
            s_and_b32 s20, s20, 7
            s_lshl_b32 s20, s20, 11
            s_lshl_b32 s21, s64, 7
            s_add_u32 s20, s20, s21
            s_add_u32 s20, s20, {F_U}""")
            p.label(f"nosig{u}")
        if s==6:
            tag_from_lds(p)
            flag_srd(p, 28)
            p(f"""v_and_b32 v15, 15, v1
            v_lshlrev_b32 v15, 7, v15
            s_lshr_b32 s17, s66, 5
            s_lshl_b32 s17, s17, 11
            s_add_u32 s17, s17, {F_U}""")
            u=p.uid()
            p(f"""s_cmp_lg_u32 s65, 15
            s_cbranch_scc1 nopause{u}
            s_sleep 100""")
            p.label(f"nopause{u}")
            p("buffer_load_dwordx2 v[22:23], v15, s[28:31], s17 offen sc1")
            p.vm.clear()
            for _ in range(NRING): g.dma()
        if s==4: g=Gemm2R(p,SC,NW0); g.setup()
    early_check(p)
    srd(p, 12, P_WS, 512*4096, UT_OFF)
    p(f"""s_lshl_b32 s20, s66, 1
    s_and_b32 s21, s77, 1
    s_add_u32 s20, s20, s21
    s_lshl_b32 s20, s20, 12""")
    p.lg.clear()
    for k in range(4):
        p.v(f"buffer_load_dwordx4 {vr(64+4*k,4)}, v6, s[12:15], s20 offen offset:{1024*k}{SC}","ut")
    p(f"""s_and_b32 s21, s77, 1
    s_mul_i32 s20, s21, {UTW}
    s_add_u32 s20, s20, {UTL}
    v_add_u32 v7, s20, v6
    v_mov_b32 v16, 0
    v_mov_b32 v17, 0
    v_mov_b32 v18, 0
    v_mov_b32 v19, 0""")
    p.d("ds_write_b128 v7, v[16:19]","z")
    p.wait(vm="ut")
    for k in range(4): p.d(f"ds_write_b128 v7, {vr(64+4*k,4)} offset:{480+1024*k}","z")
    p.wait(lg="all")
    lds_inc(p, LCNT_X)
    ls.n=n1
    p.label("A_gemm2")
    p.vm=[("d",s) for s in range(NRING) for _ in range(2)]
    ls.take(p,'g2in')
    g.preload(ls)
    ls.take(p,"wiss")
    tag_from_lds(p)
    flag_srd(p, 28)
    p(f"""v_lshlrev_b32 v15, 7, v1
    v_min_u32 v17, {29*128}, v15
    s_lshl_b32 s16, s78, 12
    s_add_u32 s16, s16, {F_H}
    s_lshl_b32 s17, s79, 1
    s_lshr_b32 s20, s78, 4
    s_add_u32 s17, s17, s20
    s_lshl_b32 s17, s17, 13
    s_add_u32 s17, s17, {F_Y}""")
    srd(p, 12, P_U, 2048*1024)
    srd(p, 8, P_DSK, 1024)
    p(f"""v_and_b32 v8, 31, v1
    v_lshrrev_b32 v14, 5, v1
    s_lshl_b32 s20, s78, 1
    s_and_b32 s21, s77, 1
    s_add_u32 s20, s20, s21
    s_lshl_b32 s20, s20, 5
    v_add_u32 v10, s20, v8
    s_lshl_b32 s21, s79, 1
    s_lshr_b32 s22, s77, 1
    s_add_u32 s21, s21, s22
    s_lshl_b32 s22, s21, 17
    s_lshl_b32 s21, s21, 6
    v_lshl_add_u32 v11, v14, 5, s21
    v_lshl_add_u32 v7, v10, 10, v11
    v_lshlrev_b32 v10, 2, v10
    s_lshl_b32 s20, s20, 1
    s_add_u32 s22, s22, s20
    v_lshrrev_b32 v12, 2, v1
    v_lshlrev_b32 v12, 12, v12
    v_and_b32 v13, 3, v1
    v_lshl_add_u32 v12, v13, 4, v12
    v_add_u32 v12, s22, v12
    s_lshl_b32 s20, s77, 11
    s_add_u32 s20, s20, {YS}
    v_add_u32 v8, s20, v6
    v_lshlrev_b32 v13, 3, v13
    v_bfe_u32 v16, v1, 4, 1
    v_lshl_add_u32 v13, v16, 5, v13
    v_bfe_u32 v16, v1, 2, 2
    v_lshl_add_u32 v16, v14, 4, v16
    v_lshl_add_u32 v13, v16, 6, v13
    v_add_u32 v13, s20, v13""")
    ls.take(p,"spill")
    u=p.uid()
    p.label(f"ph{u}")
    p(f"""s_mov_b64 exec, 0x3fffffff
    buffer_load_dwordx2 v[20:21], v17, s[28:31], s16 offen sc1
    s_waitcnt vmcnt(0)
    v_cmp_ne_u64 vcc, s[18:19], v[20:21]
    s_mov_b64 exec, -1
    s_cbranch_vccz phok{u}""")
    bound(p, f"phok{u}")
    p(f"""s_sleep 2
    s_branch ph{u}
phok{u}:""")
    p.vm.clear()
    ls.take(p,"hflag")
    while g.pool.free: g.ldh()
    R={}
    def late(s):
        if s==3:
            R["x"]=g.pool.get(); R["d"]=g.pool.get()
            for k in range(2):
                p.v(f"buffer_load_dwordx4 {vr(R['x']+4*k,4)}, v7, s[12:15], 0 offen offset:{16*k}","e")
                p.v(f"buffer_load_dwordx4 {vr(R['d']+4*k,4)}, v11, s[8:11], 0 offen offset:{16*k}","e")
        if s==12:
            a=g.pool.get(); b=g.pool.get(); R["t"]=[a,b]; c=g.pool.get()
            p.wait(vm="e")
            for k in range(8):
                t=R["t"][k//4]+2*(k%4)
                p(f"v_lshlrev_b32 v{t}, 16, v{R['x']+k}")
                p(f"v_and_b32 v{t+1}, 0xffff0000, v{R['x']+k}")
                p(f"v_lshlrev_b32 v{c}, 16, v{R['d']+k}")
                p(f"v_and_b32 v{c+1}, 0xffff0000, v{R['d']+k}")
                p(f"v_pk_mul_f32 {vr(t,2)}, {vr(t,2)}, {vr(c,2)}")
            R["g"]=c; R["y"]=R["x"]; g.pool.put(R["d"])
            srd(p, 12, P_WS, 512*4096, YT_OFF)
            srd(p, 8, P_WS, 8192, G_OFF)
            p.v(f"buffer_load_dword v{c}, v10, s[8:11], 0 offen{SC}","g")
        if s==YPOLL:
            p.v(f"buffer_load_dwordx2 {vr(R['g']+4,2)}, v15, s[28:31], s17 offen sc1","py")
        if s==YCHK:
            u=p.uid(); q=vr(R['g']+4,2)
            p.wait(vm="py")
            p.label(f"py{u}")
            p(f"""v_cmp_ne_u64 vcc, s[18:19], {q}
            s_cbranch_vccz pyok{u}""")
            bound(p, f"pyok{u}")
            p(f"""s_sleep 2
            buffer_load_dwordx2 {q}, v15, s[28:31], s17 offen sc1
            s_waitcnt vmcnt(0)
            s_branch py{u}
pyok{u}:""")
            ls.take(p,"yflag")
            p(f"s_mov_b32 s20, {16*4096}")
            p.v(f"buffer_load_dwordx4 {vr(R['y'],4)}, v12, s[12:15], 0 offen{SC}","y")
            p.v(f"buffer_load_dwordx4 {vr(R['y']+4,4)}, v12, s[12:15], s20 offen{SC}","y")
        if s in (0,10,21): ls.take(p,f"g{s}")
    g.run(late=late, depth=DEPTH)
    ACC=16
    p("v_mov_b32 v2, v12"); p("v_mov_b32 v3, v13")
    lds_wait(p, LCNT_X, 6)
    p("v_mov_b32 v12, v2"); p("v_mov_b32 v13, v3")
    for z in range(1,4):
        p(f"""s_xor_b32 s20, s77, {z}
        s_mul_i32 s21, s20, 12288
        s_cmp_eq_u32 s20, 3
        s_cselect_b32 s21, {RED3-RED}, s21
        s_add_u32 s21, s21, {RED+(z-1)*4096}
        v_add_u32 v{1+z}, s21, v6""")
    for z in range(1,4):
        for k in range(4):
            p.d(f"ds_write_b128 v{1+z}, {vr(ACC+16*z+4*k,4)} offset:{1024*k}","pw")
    p(f"""s_mul_i32 s20, s77, 12288
    s_cmp_eq_u32 s77, 3
    s_cselect_b32 s20, {RED3-RED}, s20
    s_add_u32 s20, s20, {RED}
    v_add_u32 v14, s20, v6""")
    srd(p, 8, P_OUT, 2048*1024)
    G0=R["g"]; Y=R["y"]
    p.wait(vm="all")
    p.d(f"ds_write_b128 v8, {vr(Y,4)}","y")
    p.d(f"ds_write_b128 v8, {vr(Y+4,4)} offset:1024","y")
    for j in range(4): p.d(f"ds_read_b64_tr_b16 {vr(Y+2*j,2)}, v13 offset:{256*j}","yt")
    p(f"v_mov_b32 v{G0+1}, v{G0}")
    p(f"v_sub_f32 v{G0+2}, 1.0, v{G0}")
    p(f"v_sub_f32 v{G0+3}, 1.0, v{G0}")
    p.wait(lg="all")
    ls.take(p,"pw")
    p("s_barrier")
    ls.take(p,"bar")
    free=[r for r in g.pool.free]
    T=[free[i] for i in range(6)]; A=[free[6],free[7]]
    for z in range(3):
        for k in range(4):
            p.d(f"ds_read_b128 {vr(T[2*z+k//2]+4*(k%2),4)}, v14 offset:{4096*z+1024*k}",("r",z))
    pa=lambda L,k: vr(L[k//4]+2*(k%4),2)
    for k in range(8):
        a=A[k//4]+2*(k%4)
        p(f"v_lshlrev_b32 v{a}, 16, v{Y+k}")
        p(f"v_and_b32 v{a+1}, 0xffff0000, v{Y+k}")
    for k in range(8): p(f"v_pk_add_f32 {pa(A,k)}, {pa(A,k)}, {pa(R['t'],k)}")
    for k in range(8): p(f"v_pk_mul_f32 {pa(A,k)}, {pa(A,k)}, {vr(G0,2)}")
    for z in range(3):
        p.wait(lg=[("r",z)])
        for k in range(8): p(f"v_pk_add_f32 {vr(ACC+2*k,2)}, {vr(ACC+2*k,2)}, {pa(T[2*z:2*z+2],k)}")
    for k in range(8): p(f"v_pk_fma_f32 {pa(A,k)}, {vr(ACC+2*k,2)}, {vr(G0+2,2)}, {pa(A,k)}")
    for k in range(8): p(f"v_cvt_pk_bf16_f32 v{32+k}, v{A[k//4]+2*(k%4)}, v{A[k//4]+2*(k%4)+1}")
    for k in range(2):
        p(f"buffer_store_dwordx4 {vr(32+4*k,4)}, v7, s[8:11], 0 offen offset:{16*k}")
    ls.take(p,"st")
    if os.environ.get("DBGT"):
        p(f"""s_waitcnt vmcnt(0)
        s_memrealtime s[98:99]
        s_cmp_ge_u32 s2, 7
        s_cbranch_scc1 nodbg
        s_cmp_lg_u32 s77, 0
        s_cbranch_scc1 nodbg
        s_waitcnt lgkmcnt(0)
        s_lshl_b32 s20, s2, 3
        s_add_u32 s20, s20, 8
        v_mov_b32 v2, s20
        v_mov_b32 v4, s96
        s_sub_u32 s98, s98, s96
        v_mov_b32 v5, s98
        global_store_dwordx2 v2, v[4:5], s[{P_DBG}:{P_DBG+1}]
nodbg:""")
    if ls.on:
        p("s_waitcnt vmcnt(0)")
        ls.take(p,"end"); ls.flush(p,0x40000)
    p("s_endpgm")

def f_post(p, st):
    p.label("A_post")
    p(f"v_lshlrev_b32 v18, 4, v{PTID}")
    def emit(ch,Q,Pp):
        p.d(f"ds_write_b128 v18, {vr(Q,4)} offset:{KXL+ch*KX_CH}","kx")
        p.d(f"ds_write_b128 v18, {vr(Pp,4)} offset:{KXL+ch*KX_CH+KXP_OFF}","kx")
    expand_run2(p, PGA, PTID, 20, emit)
    p(f"""v_lshrrev_b32 v19, 2, v1
    v_mul_u32_u24 v19, {KXP_OFF}, v19
    v_and_b32 v16, 3, v1
    v_lshl_add_u32 v19, v16, 4, v19
    v_mov_b32 v88, 0
    v_mov_b32 v89, 0
    v_mov_b32 v90, 0
    v_mov_b32 v91, 0
    s_mov_b64 exec, 0xffff""")
    p.d(f"ds_write_b128 v19, v[88:91] offset:{KXL+4096}","kx")
    p(f"""s_mov_b64 exec, 1
    v_mov_b32 v12, {LCNT_X}
    v_mov_b32 v14, 1""")
    p.wait(lg="all")
    p("ds_add_u32 v12, v14")
    p("s_mov_b64 exec, -1")
    tag_from_lds(p)
    flag_srd(p, 28)
    conv_setup(p, shared=True)
    p(f"""s_lshl_b32 s22, s64, 1
    s_and_b32 s23, s77, 1
    s_add_u32 s22, s22, s23
    s_lshl_b32 s22, s22, 4
    s_add_u32 s22, s22, s65
    s_lshl_b32 s22, s22, 1
    s_add_u32 s22, s22, s20
    s_lshl_b32 s22, s22, 7
    s_add_u32 s22, s22, {F_H}""")
    p("s_waitcnt vmcnt(0)")
    st.take(p,4)
    signal1(p, "s_nop 0")
    lds_wait(p, LCNT_X, 6)
    p.lg.clear()
    conv_main(p, st)
    st.take(p,5)
    conv_finish(p, st, SC)
    p("s_waitcnt vmcnt(0)")
    st.take(p,6)
    signal1(p, f"""s_lshr_b32 s22, s66, 5
    s_lshl_b32 s22, s22, 1
    s_add_u32 s22, s22, s21
    s_lshl_b32 s22, s22, 5
    s_and_b32 s23, s66, 31
    s_add_u32 s22, s22, s23
    s_lshl_b32 s22, s22, 1
    s_add_u32 s22, s22, s20
    s_lshl_b32 s22, s22, 7
    s_add_u32 s22, s22, {F_Y}""")
    st.take(p,7); st.flush(p,8,0)
    p("s_endpgm")

def build_kf(name, stamps=False):
    st=Stamps(stamps)
    ls=LaneStamps(bool(stamps)); build_kf.ls=ls
    class Sel:
        def __init__(s, m): s.m=m
        def take(s,p,k):
            if k in s.m: st.take(p,s.m[k])
    p=Prog()
    ka_prologue(p, st)
    if os.environ.get("DBGT"): p("s_memrealtime s[96:97]")
    p("s_mov_b32 s101, 0x8000")
    loader_setup(p)
    kgen_loads(p)
    p("""s_waitcnt lgkmcnt(0)
    s_cmp_lt_u32 s3, 4
    s_cbranch_scc1 A_front""")
    tag_publish(p)
    kgen_issue(p)
    p("s_barrier")
    p("s_branch A_helper")
    p.label("A_front")
    p("s_barrier")
    p("""s_cmp_eq_u32 s65, 15
    s_cbranch_scc1 A_idle""")
    ka_front(p, st)
    p(f"v_mov_b32 v{PTID}, v0")
    expand_index(p, PGA, PTID, 20, KSC)
    p("""s_add_u32 s20, s65, s68
    s_cmp_eq_u32 s20, 15
    s_cbranch_scc1 A_gate""")
    c=Prog(); ka_compute(c, Sel({2:1,4:2,5:3}), SCH)
    post=Prog(); f_post(post, st)
    g=Prog(); ka_gate(g, Sel({5:3}), SC); g("s_branch A_post")
    w=Prog(); w.label("A_idle")
    w(f"v_mov_b32 v{PTID}, v0")
    expand_index(w, PGA, PTID, 20, KSC)
    for _ in range(8): w("s_barrier")
    w("s_branch A_post")
    h=Prog(); f_helper(h, st, ls)
    lines=p.L+c.L+post.L+g.L+w.L+h.L+["A_exit:","    s_endpgm","ka_end:"]
    return kernel_text(name, lines)
```

```python
from common import *
from kgen import *
import os
SLOT = 41216
XO, WGO, WUO = 0, 16384, 16384+12288+32
NST = 8
LDS_A = 163840
KSC  = 0
KXL  = 4*TBL
RING = 34816
SB = [RING, RING+SLOT, RING+2*SLOT]
assert RING+3*SLOT <= LDS_A
ROT = int(os.environ.get('ROT','4'))
PF = int(os.environ.get('PF','0'))
MARKT = int(os.environ.get('MARKT','1'))
WDF_ST = 88
LX, LW = 236, 240
GA, TID = 243, 252
if os.environ.get('FUSED'): GA, TID = 48, 57
ET = 20

def ka_prologue(p, st):
    p.label("ka_start")
    p("s_cmp_ge_u32 s2, 256")
    p("s_cbranch_scc1 A_exit")
    load_args(p)
    st.take(p,0)
    p("""v_lshrrev_b32 v2, 6, v0
    v_and_b32 v1, 63, v0
    v_readfirstlane_b32 s3, v2
    s_and_b32 s62, s2, 7
    s_lshr_b32 s63, s2, 3
    s_lshr_b32 s65, s62, 1           ; q
    s_mul_i32 s66, s65, 28
    s_add_u32 s66, s66, s63
    s_lshl_b32 s65, s65, 1
    s_and_b32 s64, s63, 1
    s_add_u32 s64, s64, s65
    s_bfe_u32 s65, s63, 0x10001
    s_add_u32 s65, s65, 14
    s_lshl_b32 s65, s65, 3
    s_add_u32 s65, s65, s64
    s_cmp_ge_u32 s63, 28
    s_cselect_b32 s66, s65, s66
    s_lshr_b32 s65, s66, 3           ; s65 = ft (0..15)
    s_and_b32 s64, s66, 7
    s_and_b32 s66, s62, 1
    s_lshl_b32 s66, s66, 3
    s_add_u32 s64, s64, s66
    s_lshl_b32 s66, s64, 4
    s_add_u32 s66, s66, s65          ; s66 = widx
    s_and_b32 s77, s3, 3             ; s77 = wave & 3""")
    if ROT==8:
        p("""s_and_b32 s76, s65, 3
        s_lshl_b32 s76, s76, 1
        s_add_u32 s76, s76, s64""")
    elif ROT==4:
        p("""s_add_u32 s76, s65, s64
        s_and_b32 s76, s76, 3
        s_lshl_b32 s76, s76, 1""")

def gelu_tile(p, acc, tmp, dst, cC0, cC1, cONE):
    prs = range(4)
    g = lambda i: vr(acc+2*i,2); u = lambda i: vr(acc+8+2*i,2)
    t = lambda i: vr(tmp+2*i,2); q = lambda i: vr(tmp+8+2*i,2)
    for i in prs: p(f"v_pk_mul_f32 {t(i)}, {g(i)}, {g(i)}")
    for i in prs: p(f"v_pk_fma_f32 {t(i)}, {t(i)}, {vr(cC1,2)}, {vr(cC0,2)}")
    for i in prs: p(f"v_pk_mul_f32 {t(i)}, {t(i)}, {g(i)}")
    for i in range(8): p(f"v_exp_f32 v{tmp+i}, v{tmp+i}")
    for i in prs: p(f"v_pk_mul_f32 {q(i)}, {g(i)}, {u(i)}")
    for i in prs: p(f"v_pk_add_f32 {t(i)}, {t(i)}, {vr(cONE,2)}")
    for i in range(8): p(f"v_rcp_f32 v{tmp+i}, v{tmp+i}")
    for i in prs: p(f"v_pk_mul_f32 {q(i)}, {q(i)}, {t(i)}")
    for i in prs: p(f"v_cvt_pk_bf16_f32 v{dst+i}, v{tmp+8+2*i}, v{tmp+9+2*i}")

def loader_setup(p, si=77, lx=LX, lw=LW, sx=72, sw=73):
    p(f"""v_lshrrev_b32 v2, 3, v1
    v_and_b32 v3, 7, v1              ; pos
    v_lshrrev_b32 v4, 4, v1          ; l>>4
    s_lshl_b32 s68, s64, 7           ; rb*128
    s_lshl_b32 s69, s{si}, 5
    s_add_u32 s68, s68, s69
    v_add_u32 v2, s68, v2
    v_lshlrev_b32 v2, 10, v2
    v_xor_b32 v5, v4, v3""")
    p(f"v_lshl_add_u32 v{lx}, v5, 4, v2")
    p(f"v_xor_b32 v{lx+1}, 64, v{lx}")
    p(f"v_add_u32 v{lx+1}, 8192, v{lx+1}")
    p(f"v_add_u32 v{lx+2}, 16384, v{lx}")
    p(f"v_add_u32 v{lx+3}, 16384, v{lx+1}")
    p(f"""s_mul_i32 s68, s{si}, 192
    s_mul_i32 s69, s65, 192          ; f0*2 bytes
    s_mov_b32 s70, 43691
    v_add_u32 v2, s68, v1""")
    for j in range(3):
        p(f"""v_add_u32 v5, {64*j}, v2
        v_mul_u32_u24 v6, s70, v5
        v_lshrrev_b32 v6, 19, v6         ; k = p/12
        v_mul_u32_u24 v6, {2752-192}, v6
        v_lshl_add_u32 v6, v5, 4, v6
        v_add_u32 v{lw+j}, s69, v6""")
    p(f"""s_lshl_b32 s{sx}, s{si}, 12
    s_mul_i32 s{sw}, s{si}, 3072
    s_add_u32 s{sw}, s{sw}, {WGO}""")

def loader_srds(p):
    srd(p, 4, P_U, 2048*1024)
    srd(p, 8, P_WG, 512*2752)
    srd(p, 12, P_WU, 512*2752)

def ka_issue(p, s, sets=((LX,LW,72,73),)):
    slot=SB[s%3]
    p(f"s_add_u32 s74, s76, {s}")
    p(f"s_and_b32 s74, s74, 7")
    p(f"s_mul_i32 s75, s74, {64*2752}")
    p(f"s_lshl_b32 s74, s74, 7")
    for lx,lw,sx,sw in sets:
        for j in range(4):
            p(f"s_add_u32 m0, s{sx}, {slot+XO+j*1024}")
            p.v(f"buffer_load_dwordx4 v{lx+j}, s[4:7], s74 offen lds", ("st",s))
    for lx,lw,sx,sw in sets:
        for j in range(3):
            p(f"s_add_u32 m0, s{sw}, {slot+j*1024}")
            p.v(f"buffer_load_dwordx4 v{lw+j}, s[8:11], s75 offen lds", ("st",s))
            p(f"s_add_u32 m0, s{sw}, {slot+j*1024+WUO-WGO}")
            p.v(f"buffer_load_dwordx4 v{lw+j}, s[12:15], s75 offen lds", ("st",s))

def x_addr(p, XA):
    p(f"""v_and_b32 v2, 31, v1             ; mm
    v_lshrrev_b32 v3, 5, v1          ; h
    v_bfe_u32 v4, v1, 1, 3           ; (mm>>1)&7
    s_lshl_b32 s69, s67, 13
    s_add_u32 s69, s69, {RING}
    v_lshlrev_b32 v5, 7, v2
    v_add_u32 v5, s69, v5""")
    for ks in range(4):
        p(f"v_or_b32 v6, {2*ks}, v3")
        p(f"v_xor_b32 v6, v6, v4")
        p(f"v_lshl_add_u32 v{XA+ks}, v6, 4, v5")
        for s in (1,2):
            p(f"v_add_u32 v{XA+4*s+ks}, {s*SLOT}, v{XA+ks}")

def ka_front(p, st):
    loader_srds(p)
    ka_issue(p, 0)
    p("""s_and_b32 s67, s3, 1
    s_lshr_b32 s68, s3, 1""")

def ka_compute(p, st, SC="", last=None, mark=None):
    ACC=16; FR=112; XA=152; WA=164; TMP=168; CST=184; OUT=192
    acc = lambda t,mt: ACC+(t*2+mt)*16
    fa = lambda s,t: FR+20*s+4*t
    fb = lambda s,mt: FR+20*s+12+4*mt
    p.vm=[("st",0)]*10
    x_addr(p, XA)
    p(f"""v_bfe_u32 v6, v1, 4, 1
    v_mul_u32_u24 v6, {WUO-WGO}, v6
    v_lshlrev_b32 v7, 3, v3          ; 8h
    v_bfe_u32 v8, v1, 2, 2
    v_add_u32 v7, v7, v8
    v_mul_u32_u24 v7, 192, v7
    v_add_u32 v6, v6, v7
    v_and_b32 v7, 3, v1
    v_lshl_add_u32 v6, v7, 3, v6
    s_mul_i32 s69, s68, 96
    s_add_u32 s69, s69, {RING+WGO}
    v_add_u32 v{WA}, s69, v6
    v_add_u32 v{WA+1}, {SLOT}, v{WA}
    v_add_u32 v{WA+2}, {2*SLOT}, v{WA}""")
    c0 = -2*0.7978845608028654*LOG2E
    p(f"""v_mov_b32 v{CST}, {f32(c0)}
    v_mov_b32 v{CST+1}, {f32(c0)}
    v_mov_b32 v{CST+2}, {f32(c0*0.044715)}
    v_mov_b32 v{CST+3}, {f32(c0*0.044715)}
    v_mov_b32 v{CST+4}, 1.0
    v_mov_b32 v{CST+5}, 1.0""")
    ka_issue(p, 1)
    srd(p, 16, P_WS, H_BYTES, H_OFF)
    p("""s_lshl_b32 s70, s64, 2
    s_lshl_b32 s71, s67, 1
    s_add_u32 s70, s70, s71
    s_mul_i32 s70, s70, 86
    s_mul_i32 s71, s65, 6
    s_mul_i32 s72, s68, 3
    s_add_u32 s71, s71, s72
    s_add_u32 s70, s70, s71
    s_lshl_b32 s70, s70, 10
    v_lshlrev_b32 v9, 4, v1""")
    def reads(s, ks, fs):
        slot = s%3
        L=[]
        for mt in range(2):
            L.append(f"ds_read_b128 {vr(fb(fs,mt),4)}, v{XA+4*slot+ks} offset:{XO+4096*mt}")
        for t in range(3):
            for half in range(2):
                L.append(f"ds_read_b64_tr_b16 {vr(fa(fs,t)+2*half,2)}, v{WA+slot} offset:{ks*3072+half*768+t*32}")
        return [L[0],L[2],L[3],L[1],L[4],L[5],L[6],L[7]]
    p.wait(vm=[("st",0)])
    st.take(p,1)
    p("s_barrier")
    st.take(p,2)
    for x in reads(0,0,0): p.d(x,"f")
    n=0
    for s in range(NST):
        for ks in range(4):
            fs = n%2
            p.wait(lg="all", vm=("all" if (s==0 and ks==3) else None))
            nxt=None
            if ks==3:
                if s<NST-1:
                    if last and s==NST-2: last(p)
                    else: p("s_barrier")
                    nxt=reads(s+1,0,1-fs)
                    if s==3: st.take(p,3)
            else: nxt=reads(s,ks+1,1-fs)
            nxt = nxt or []
            k=0
            order=[(0,0),(0,1),(1,0),(1,1),(2,0),(2,1)]
            per=[2,2,2,1,1,0]
            for j,(t,mt) in enumerate(order):
                c = "0" if n==0 else vr(acc(t,mt),16)
                p(f"v_mfma_f32_32x32x16_bf16 {vr(acc(t,mt),16)}, {vr(fa(fs,t),4)}, {vr(fb(fs,mt),4)}, {c}")
                for _ in range(per[j]):
                    if k<len(nxt): p.d(nxt[k],"f"); k+=1
            n+=1
    st.take(p,4)
    def stores(ts):
        for t in ts:
            for mt in range(2):
                p(f"s_add_u32 s72, s70, {(mt*86+t)*1024}")
                p(f"buffer_store_dwordx4 {vr(FR+4*(t*2+mt),4)}, v9, s[16:19], s72 offen{SC}")
    for t in range(3):
        if t==MARKT and mark: mark(p)
        if t==2:
            p("s_cmp_ge_u32 s71, 84")
            p("s_cbranch_scc1 A_compute_short")
        for mt in range(2):
            gelu_tile(p, acc(t,mt), TMP, FR+4*(t*2+mt), CST, CST+2, CST+4)
    stores([2])
    p.label("A_compute_short")
    stores([0,1])
    p.label("A_compute_done")
    st.take(p,5)

def ka_gate(p, st, SC="", last=None):
    GW=16; XA=152; FB=48; AC=80
    gwreg=lambda s,ks: GW+16*(s%2)+4*ks
    p.label("A_gate")
    p.vm=[("st",0)]*10
    x_addr(p, XA)
    srd(p, 16, P_GW, 1024)
    p("v_lshlrev_b32 v14, 4, v3")
    def gwload(s):
        p(f"s_add_u32 s75, s76, {s}")
        p("s_and_b32 s75, s75, 7")
        p("s_lshl_b32 s75, s75, 7")
        for ks in range(4):
            p.v(f"buffer_load_dwordx4 {vr(gwreg(s,ks),4)}, v14, s[16:19], s75 offen offset:{32*ks}",("gw",s))
    ka_issue(p, 1)
    gwload(0)
    for s in range(NST):
        slot=s%3
        if s<2: p.wait(vm=[("st",s)])
        if last and s==NST-1: last(p)
        else: p("s_barrier")
        for ks in range(4):
            for mt in range(2):
                p.d(f"ds_read_b128 {vr(FB+(ks*2+mt)*4,4)}, v{XA+4*slot+ks} offset:{XO+4096*mt}","f")
        if s<NST-1: gwload(s+1)
        p.wait(vm=[("gw",s)], lg="all")
        for ks in range(4):
            for mt in range(2):
                c = "0" if (s==0 and ks==0) else vr(AC+16*mt,16)
                p(f"v_mfma_f32_32x32x16_bf16 {vr(AC+16*mt,16)}, {vr(gwreg(s,ks),4)}, {vr(FB+(ks*2+mt)*4,4)}, {c}")
    srd(p, 16, P_WS, 8192, G_OFF)
    p(f"""v_lshlrev_b32 v11, 2, v2
    s_lshl_b32 s70, s64, 9
    s_lshl_b32 s71, s67, 8
    s_add_u32 s70, s70, s71""")
    for mt in range(2):
        a=AC+16*mt
        p(f"""v_cvt_pk_bf16_f32 v12, v{a}, v{a}
        v_and_b32 v12, 0xffff0000, v12
        v_mul_f32 v12, {f32(-LOG2E)}, v12
        v_exp_f32 v12, v12
        v_add_f32 v12, 1.0, v12
        v_rcp_f32 v12, v12
        v_cvt_pk_bf16_f32 v12, v12, v12
        v_and_b32 v{6+mt}, 0xffff0000, v12
        buffer_store_dword v{6+mt}, v11, s[16:19], s70 offen offset:{128*mt}{SC}""")
    st.take(p,5)

def ka_ut(p, s, SC=""):
    u=p.uid()
    TR=144
    p(f"""s_lshr_b32 s20, s65, 2
    s_cmp_lg_u32 s20, {s}
    s_cbranch_scc1 A_nout{u}""")
    p(f"""v_lshrrev_b32 v44, 4, v1
    v_bfe_u32 v45, v1, 2, 2
    v_bfe_u32 v46, v1, 1, 1
    v_lshlrev_b32 v44, 4, v44
    v_lshl_add_u32 v44, v46, 3, v44
    v_add_u32 v44, v44, v45
    v_bfe_u32 v45, v44, 1, 3
    v_lshlrev_b32 v44, 7, v44
    v_lshl_add_u32 v44, v45, 4, v44
    v_and_b32 v45, 1, v1
    v_lshl_add_u32 v44, v45, 3, v44
    s_and_b32 s20, s77, 1
    s_lshl_b32 s21, s20, 13
    s_add_u32 s21, s21, {SB[s%3]+XO}
    v_add_u32 v44, s21, v44
    s_lshr_b32 s21, s77, 1
    s_lshl_b32 s21, s21, 6
    v_xor_b32 v44, s21, v44""")
    for cg in range(4):
        for half in range(2):
            p(f"v_xor_b32 v{186+(2*cg+half)%4}, {(cg<<4)^(half*32)}, v44")
            p(f"ds_read_b64_tr_b16 {vr(TR+4*cg+2*half,2)}, v{186+(2*cg+half)%4} offset:{half*512}")
    srd(p, 28, P_WS, 512*4096, UT_OFF)
    p(f"""v_and_b32 v45, 7, v1
    v_lshlrev_b32 v45, 12, v45
    v_lshrrev_b32 v46, 3, v1
    v_lshl_add_u32 v45, v46, 4, v45
    s_lshl_b32 s20, s20, 7
    s_lshl_b32 s21, s21, 11
    s_add_u32 s20, s20, s21
    s_lshl_b32 s21, s64, 8
    s_add_u32 s20, s20, s21
    s_add_u32 s21, s76, {s}
    s_and_b32 s21, s21, 7
    s_lshl_b32 s21, s21, 18
    s_add_u32 s20, s20, s21
    s_waitcnt lgkmcnt(0)""")
    for cg in range(4):
        p(f"buffer_store_dwordx4 {vr(TR+4*cg,4)}, v45, s[28:31], s20 offen{SC}")
        if cg<3: p(f"s_add_u32 s20, s20, {8*4096}")
    p.label(f"A_nout{u}")

def ka_expand(p, fused, ch):
    if not fused:
        srd(p, 28, P_WS, 512*KX_CH, KX_OFF)
        p(f"s_mul_i32 s20, s66, {2*KX_CH}")
    p(f"v_lshlrev_b32 v18, 4, v{TID}")
    def emit(ch,Q,Pp):
        if fused:
            p.d(f"ds_write_b128 v18, {vr(Q,4)} offset:{KXL+ch*KX_CH}","kx")
            p.d(f"ds_write_b128 v18, {vr(Pp,4)} offset:{KXL+ch*KX_CH+KXP_OFF}","kx")
            return
        p(f"s_add_u32 s21, s20, {ch*KX_CH}")
        p.v(f"buffer_store_dwordx4 {vr(Q,4)}, v18, s[28:31], s21 offen","kx")
        p(f"s_add_u32 s21, s20, {ch*KX_CH+KXP_OFF}")
        p.v(f"buffer_store_dwordx4 {vr(Pp,4)}, v18, s[28:31], s21 offen","kx")
    expand_run(p, GA, TID, ET, emit, (ch,))
    if ch==0:
        if fused: p.wait(lg='all')
        return
    u=p.uid()
    p(f"""v_lshrrev_b32 v19, 2, v{TID}
    v_mul_u32_u24 v19, {KXP_OFF}, v19
    v_and_b32 v{ET}, 3, v{TID}
    v_lshl_add_u32 v19, v{ET}, 4, v19
    v_add_u32 v19, 4096, v19
    v_mov_b32 v{ET}, 0
    v_mov_b32 v{ET+1}, 0
    v_mov_b32 v{ET+2}, 0
    v_mov_b32 v{ET+3}, 0
    v_cmp_gt_u32 vcc, 16, v{TID}
    s_and_saveexec_b64 s[22:23], vcc
    s_cbranch_execz A_notail{u}""")
    if fused: p(f"ds_write_b128 v19, {vr(ET,4)} offset:{KXL}")
    else: p(f"buffer_store_dwordx4 {vr(ET,4)}, v19, s[28:31], s20 offen")
    p.label(f"A_notail{u}")
    p("s_mov_b64 exec, s[22:23]")
    if fused: p.wait(lg="all")

def ka_helper(p, st, fused=False, SC=""):
    p.label("A_helper")
    p.vm=["kp"]*5
    loader_srds(p)
    p(f"v_subrev_u32 v{TID}, 256, v0")
    expand_index(p, GA, TID, ET, KSC)
    p(f"s_mul_i32 s23, s77, {TBL}")
    def issue(s):
        u=p.uid()
        p("s_cmp_eq_u32 s65, 15")
        p(f"s_cbranch_scc1 A_noissue{u}")
        ka_issue(p, s)
        p.label(f"A_noissue{u}")
    kgen_compute(p, 23, None, st)
    st.take(p,2)
    for s in range(NST):
        if s>=2: p.wait(vm=[("st",s)])
        if s==4: st.take(p,4)
        p("s_barrier")
        if s+2<NST: issue(s+2)
        if s<2: ka_ut(p, s, SC)
        if s==2: st.take(p,3)
    ka_expand(p, fused, 0)
    ka_expand(p, fused, 1)
    st.take(p,5)

def ka_wdf(p, st, SC=""):
    p.label("A_wdf")
    p(f"""v_lshrrev_b32 v2, 4, v1
    v_and_b32 v3, 15, v1
    v_lshlrev_b32 v10, 10, v2
    v_lshl_add_u32 v10, v3, 4, v10
    s_lshl_b32 s68, s77, 8
    v_add_u32 v10, s68, v10
    s_mul_i32 s72, s77, 24576
    s_add_u32 s72, s72, {RING}
    s_lshl_b32 s68, s64, 14
    s_waitcnt lgkmcnt(0)""")
    srd(p, 4, P_WD, 1376*1024)
    for j in range(6):
        for k in range(4):
            p(f"s_add_u32 s74, s68, {j*16*16384+k*4096}")
            p(f"s_add_u32 m0, s72, {j*4096+k*1024}")
            p.v(f"buffer_load_dwordx4 v10, s[4:7], s74 offen lds",("u",j))
    p("""v_lshrrev_b32 v4, 5, v1
    v_bfe_u32 v5, v1, 2, 2
    v_lshl_add_u32 v4, v4, 2, v5
    v_lshlrev_b32 v4, 8, v4
    v_and_b32 v5, 1, v1
    v_lshl_add_u32 v4, v5, 5, v4
    v_bfe_u32 v5, v1, 4, 1
    v_lshl_add_u32 v4, v5, 4, v4
    v_bfe_u32 v5, v1, 1, 1
    v_lshl_add_u32 v4, v5, 3, v4
    v_add_u32 v4, s72, v4
    v_lshlrev_b32 v9, 4, v1""")
    srd(p, 8, P_WS, 16*WDF_ST*1024, WDF_OFF)
    p(f"""s_mul_i32 s70, s77, {4*WDF_ST}
    s_add_u32 s70, s70, s64
    s_lshl_b32 s70, s70, 10""")
    for j in range(6):
        if j==5:
            p("s_cmp_ge_u32 s64, 8")
            p("s_cbranch_scc1 A_wdf_done")
        p.wait(vm=[("u",j)])
        R=96+16*(j%2)
        for x in range(4):
            for half in range(2):
                p.d(f"ds_read_b64_tr_b16 {vr(R+4*x+2*half,2)}, v4 offset:{j*4096+half*2048+x*64}",("x",x))
        for x in range(4):
            p.wait(lg=[("x",x)])
            p(f"s_add_u32 s74, s70, {(x*WDF_ST+16*j)*1024}")
            p.v(f"buffer_store_dwordx4 {vr(R+4*x,4)}, v9, s[8:11], s74 offen{SC}","o")
    p.label("A_wdf_done")
    st.take(p,5)

def build_ka(stamps=False):
    st=Stamps(stamps)
    p=Prog()
    ka_prologue(p, st)
    if PF:
        p("s_lshl_b32 s29, s63, 3\ns_add_u32 s29, s29, s3\ns_and_b32 s29, s29, 31")
        code_prefetch(p, "ka_start", "ka_end", 29, tmp=226)
    loader_setup(p)
    kgen_loads(p)
    p("""s_waitcnt lgkmcnt(0)
    s_cmp_lt_u32 s3, 4
    s_cbranch_scc1 A_front""")
    kgen_issue(p)
    p("s_barrier")
    p("s_branch A_helper")
    p.label("A_front")
    p("s_barrier")
    p("""s_cmp_eq_u32 s65, 15
    s_cbranch_scc1 A_wdf""")
    ka_front(p, st)
    p("""s_add_u32 s20, s65, s68
    s_cmp_eq_u32 s20, 15
    s_cbranch_scc1 A_gate""")
    parts=[p]
    for fn in (ka_compute, ka_gate, ka_helper, ka_wdf):
        q=Prog(); st.on=stamps; fn(q, st); st.on=stamps
        q("s_waitcnt vmcnt(0)")
        st.take(q,6); st.flush(q,7,0)
        q("s_endpgm")
        parts.append(q)
    lines=sum((q.L for q in parts),[])+["A_exit:","    s_endpgm","ka_end:"]
    return kernel_text("ka_kernel", lines)
```

```python
from ka import *
LDS_B = 163840
FUSED = bool(os.environ.get("FUSED"))
UTL  = SB[2] if FUSED else RING
UTW  = 4608
NRING = 5
RINGB = NRING*2048
if FUSED: UTL = SB[0]
XCH  = 0 if FUSED else UTL + 4*UTW
RED  = SB[1] if FUSED else XCH + 4*4096
RED3 = SB[0] + 2*UTW + 8192 if FUSED else RED+3*12288
YS   = UTL + 2*UTW if FUSED else RED + 4*12288
YP   = 192
LFLAG = KXL + 2*KX_CH
assert LFLAG+64 <= RING and YS+8192 <= LDS_B and RED3+12288 <= SB[1]
NSTEP = 22
MAP2 = int(os.environ.get('MAP2','0'))

def kb_decode(p):
    if MAP2:
        p("""s_lshr_b32 s78, s62, 1
        s_lshl_b32 s78, s78, 3
        s_lshr_b32 s79, s63, 2
        s_add_u32 s78, s78, s79
        s_and_b32 s79, s62, 1
        s_lshl_b32 s79, s79, 2
        s_and_b32 s20, s63, 3
        s_add_u32 s79, s79, s20""")
        return
    p("""s_lshl_b32 s78, s62, 2
    s_lshr_b32 s79, s63, 3
    s_add_u32 s78, s78, s79
    s_and_b32 s79, s63, 7""")

def conv_setup(p, shared=False):
    FA=4; GAa=8
    p(f"""v_lshlrev_b32 v2, 4, v1
    v_and_b32 v10, 15, v1            ; i / a
    v_lshrrev_b32 v11, 4, v1         ; q
    s_lshr_b32 s20, s77, 1
    s_and_b32 s21, s77, 1            ; half
    v_and_b32 v12, 1, v10
    v_mul_u32_u24 v12, {KXP_OFF}, v12
    v_lshrrev_b32 v13, 1, v10
    v_lshlrev_b32 v14, 2, v11
    v_sub_u32 v13, v14, v13
    v_lshl_add_u32 v12, v13, 2, v12
    s_mul_i32 s22, s20, {KX_CH}
    s_lshl_b32 s23, s21, 8
    s_sub_u32 s22, s22, s23
    s_add_u32 s22, s22, {KXL + 4*(1015-48-128)}
    v_add_u32 v{FA}, s22, v12""")
    for j in range(1,4): p(f"v_subrev_u32 v{FA+j}, {1024*j}, v{FA}")
    p(f"""s_mul_i32 s22, {'s20' if shared else 's77'}, {UTW}
    s_add_u32 s22, s22, {UTL}
    v_add_u32 v9, s22, v2
    s_sub_u32 s22, s22, s23
    s_add_u32 s22, s22, {448-192}
    v_lshlrev_b32 v12, 5, v10
    v_lshl_add_u32 v12, v11, 4, v12
    v_add_u32 v{GAa}, s22, v12""")

def conv_ut_load(p, SC):
    srd(p, 4, P_WS, 512*4096, UT_OFF)
    p(f"""s_lshl_b32 s22, s66, 1
    s_add_u32 s22, s22, s20
    s_lshl_b32 s22, s22, 12""")
    for k in range(4):
        p.v(f"buffer_load_dwordx4 {vr(16+4*k,4)}, v2, s[4:7], s22 offen offset:{1024*k}{SC}","ut")

def conv_ut_stage(p):
    p("""v_mov_b32 v32, 0
    v_mov_b32 v33, 0
    v_mov_b32 v34, 0
    v_mov_b32 v35, 0""")
    p.d("ds_write_b128 v9, v[32:35]","z")
    p.wait(vm="ut")
    for k in range(4):
        p.d(f"ds_write_b128 v9, {vr(16+4*k,4)} offset:{480+1024*k}","z")

def conv_reads(k):
    FA=4; GAa=8; FR=48
    F=lambda b,i: FR+64*b+4*i
    G=lambda b,j: FR+64*b+32+4*j
    b=k%2; L=[]
    for x in range(8):
        o=(3-k)*16+(128 if x%2==0 else 0)
        L.append((f"ds_read2_b32 {vr(F(b,x),2)}, v{FA+x//2} offset0:{o} offset1:{o+1}",("F",k,x)))
        L.append((f"ds_read2_b32 {vr(F(b,x)+2,2)}, v{FA+x//2} offset0:{o+2} offset1:{o+3}",("F",k,x)))
        L.append((f"ds_read_b128 {vr(G(b,x),4)}, v{GAa} offset:{(3-k)*64+512*x}",("G",k,x)))
    return L

def conv_main(p, st, pre=False):
    ACC=16; FR=48
    F=lambda b,i: FR+64*b+4*i
    G=lambda b,j: FR+64*b+32+4*j
    if not pre:
        for ins,tag in conv_reads(0): p.d(ins,tag)
    for k in range(4):
        b=k%2
        nxt = conv_reads(k+1) if k<3 else []
        pairs=sorted([(i,j) for i in range(8) for j in range(8) if i+j<8], key=lambda ij:(max(ij),ij))
        seen=set(); have=-1; z=0
        for n,(i,j) in enumerate(pairs):
            m=max(i,j)
            if m>have:
                p.wait(lg=[("G",k,m)]); have=m
            t=i+j
            c = "0" if (k==0 and t not in seen) else vr(ACC+4*t,4)
            seen.add(t)
            p(f"v_mfma_f32_16x16x32_bf16 {vr(ACC+4*t,4)}, {vr(F(b,i),4)}, {vr(G(b,j),4)}, {c}")
            if n>=8 and z<len(nxt) :
                p.d(*nxt[z]); z+=1
        while z<len(nxt): p.d(*nxt[z]); z+=1

def conv_finish(p, st, SC):
    ACC=16
    u=p.uid()
    p(f"""s_cmp_eq_u32 s21, 0
    s_cbranch_scc1 B_noswap{u}""")
    for k in range(16): p(f"v_swap_b32 v{ACC+k}, v{ACC+16+k}")
    p.label(f"B_noswap{u}")
    p(f"""s_lshl_b32 s22, s77, 12
    s_xor_b32 s23, s22, 4096
    s_add_u32 s22, s22, {XCH}
    s_add_u32 s23, s23, {XCH}
    v_add_u32 v10, s22, v2
    v_add_u32 v11, s23, v2
    s_lshl_b32 s22, s77, 2
    s_add_u32 s22, s22, {LFLAG}
    v_mov_b32 v12, s22
    v_xor_b32 v13, 4, v12
    v_mov_b32 v14, 1""")
    for k in range(4): p(f"ds_write_b128 v10, {vr(ACC+16+4*k,4)} offset:{1024*k}")
    p("s_waitcnt lgkmcnt(0)")
    p("ds_write_b32 v12, v14")
    srd(p, 4, P_WS, 512*4096, YT_OFF)
    p(f"""v_and_b32 v15, 15, v1
    v_lshlrev_b32 v15, 5, v15
    v_bfe_u32 v48, v1, 4, 1
    v_lshl_add_u32 v15, v48, 9, v15
    v_lshrrev_b32 v48, 5, v1
    v_lshl_add_u32 v15, v48, 4, v15
    s_lshl_b32 s22, s66, 1
    s_add_u32 s22, s22, s20
    s_lshl_b32 s22, s22, 12
    s_lshl_b32 s23, s21, 11
    s_add_u32 s22, s22, s23""")
    p.label(f"B_pair{u}")
    p(f"""ds_read_b32 v48, v13
    s_waitcnt lgkmcnt(0)
    v_readfirstlane_b32 s23, v48
    s_cmp_lg_u32 s23, 0
    s_cbranch_scc1 B_pairok{u}
    s_sub_u32 s101, s101, 1
    s_cmp_lt_i32 s101, 0
    s_cbranch_scc0 B_pair{u}
B_pairok{u}:""")
    for k in range(4): p(f"ds_read_b128 {vr(ACC+16+4*k,4)}, v11 offset:{1024*k}")
    p("s_waitcnt lgkmcnt(0)")
    for k in range(8): p(f"v_pk_add_f32 {vr(ACC+2*k,2)}, {vr(ACC+2*k,2)}, {vr(ACC+16+2*k,2)}")
    for t in range(4):
        for z in range(2): p(f"v_cvt_pk_bf16_f32 v{48+2*t+z}, v{ACC+4*t+2*z}, v{ACC+4*t+2*z+1}")
    for pr in range(2):
        for z in range(2): p(f"v_permlane16_swap_b32 v{48+4*pr+z}, v{48+4*pr+2+z}")
    for pr in range(2):
        p(f"buffer_store_dwordx4 {vr(48+4*pr,4)}, v15, s[4:7], s22 offen offset:{1024*pr}{SC}")

def lds_last(p, lbl_skip, cnt):
    p(f"""v_mov_b32 v12, {LFLAG+16}
    v_mov_b32 v14, 1
    s_mov_b64 s[22:23], exec
    s_mov_b64 exec, 1
    ds_add_rtn_u32 v13, v12, v14
    s_waitcnt lgkmcnt(0)
    v_readfirstlane_b32 s24, v13
    s_mov_b64 exec, s[22:23]
    s_cmp_lg_u32 s24, {cnt-1}
    s_cbranch_scc1 {lbl_skip}""")

class Pool:
    def __init__(self, base, n): self.free=[base+8*i for i in range(n)]
    def get(self): return self.free.pop(0)
    def put(self, r): self.free.append(r)

def gemm2_setup(p):
    srd(p, 4, P_WS, H_BYTES, H_OFF)
    srd(p, 8, P_WS, WDF_BYTES, WDF_OFF)
    p(f"""v_lshlrev_b32 v6, 4, v1
    s_and_b32 s20, s77, 1
    s_lshl_b32 s21, s78, 1
    s_add_u32 s21, s21, s20
    s_mul_i32 s22, s21, {86*1024}
    v_add_u32 v2, s22, v6
    s_xor_b32 s21, s21, 1
    s_mul_i32 s22, s21, {86*1024}
    v_add_u32 v3, s22, v6
    s_lshr_b32 s20, s77, 1
    s_lshl_b32 s21, s79, 1
    s_add_u32 s21, s21, s20
    s_mul_i32 s22, s21, {WDF_ST*1024}
    v_add_u32 v4, s22, v6
    s_xor_b32 s21, s21, 1
    s_mul_i32 s22, s21, {WDF_ST*1024}
    v_add_u32 v5, s22, v6""")
    p(f"""s_lshr_b32 s25, s63, 3
    s_lshl_b32 s25, s25, 1
    s_add_u32 s24, s79, s25
    s_mul_i32 s24, s24, 11
    s_lshr_b32 s24, s24, 2
    s_cmp_ge_u32 s24, {NSTEP}
    s_cselect_b32 s25, {NSTEP}, 0
    s_sub_u32 s24, s24, s25
    s_lshl_b32 s24, s24, 2
    s_add_u32 s24, s24, s77
    s_lshl_b32 s24, s24, 10
    s_mov_b32 s25, s24
    s_lshl_b32 s26, s77, 10""")

def adv(p, r):
    p(f"""s_add_u32 s{r}, s{r}, 4096
    s_cmp_ge_u32 s{r}, {88*1024}
    s_cselect_b32 s{r}, s26, s{r}""")

class Gemm2:
    ACC=16
    def __init__(self, p, SC):
        self.p=p; self.SC=SC; self.pool=Pool(80,22); self.W={}; self.H={}; self.nw=0; self.nh=0; self.spill=None
    def ldw(self):
        p=self.p; s=self.nw; r=self.pool.get(); self.W[s]=r; self.nw+=1
        if self.spill:
            a,s0=self.spill
            p.d(f"ds_read_b128 {vr(r,4)}, v{a} offset:{(s-s0)*2048}",("w",s))
            p.d(f"ds_read_b128 {vr(r+4,4)}, v{a} offset:{(s-s0)*2048+1024}",("w",s))
            return
        scw = os.environ.get("SCW", self.SC)
        thr = int(os.environ.get("THR","99"))
        if s>=thr: p.wait(vm=[("w",s-thr)])
        p.v(f"buffer_load_dwordx4 {vr(r,4)}, v4, s[8:11], s24 offen{scw}",("w",s))
        p.v(f"buffer_load_dwordx4 {vr(r+4,4)}, v5, s[8:11], s24 offen{scw}",("w",s))
        adv(p,24)
    def ldh(self):
        p=self.p; s=self.nh; r=self.pool.get(); self.H[s]=r; self.nh+=1
        p(f"s_min_u32 s27, s25, {85*1024}")
        p.v(f"buffer_load_dwordx4 {vr(r,4)}, v2, s[4:7], s27 offen{self.SC}",("h",s))
        p.v(f"buffer_load_dwordx4 {vr(r+4,4)}, v3, s[4:7], s27 offen{self.SC}",("h",s))
        adv(p,25)
    def run(self, late=None, depth=99):
        p=self.p
        for s in range(NSTEP):
            p.wait(vm=[("w",s),("h",s)], lg=[("w",s)])
            w,h=self.W[s],self.H[s]
            for dz in range(2):
                for mz in range(2):
                    a=self.ACC+16*(2*dz+mz)
                    p(f"v_mfma_f32_32x32x16_bf16 {vr(a,16)}, {vr(w+4*dz,4)}, {vr(h+4*mz,4)}, {'0' if s==0 else vr(a,16)}")
            self.pool.put(w); self.pool.put(h)
            if self.spill:
                for _ in range(2):
                    if self.nh<min(NSTEP,s+1+depth): self.ldh()
                if self.nw<NSTEP and self.nw<=s+3: self.ldw()
            else:
                for _ in range(2):
                    if self.nw<NSTEP and (self.nw<=self.nh or self.nh>=NSTEP): self.ldw()
                    elif self.nh<NSTEP: self.ldh()
            if late: late(s)

def gemm2_epi_loads(p, X, gsrd=True):
    srd(p, 12, P_U, 2048*1024)
    srd(p, 8, P_DSK, 1024)
    if gsrd: srd(p, 28, P_WS, 8192, G_OFF)
    p(f"""v_and_b32 v8, 31, v1
    v_lshrrev_b32 v9, 5, v1
    s_lshl_b32 s20, s78, 1
    s_and_b32 s21, s77, 1
    s_add_u32 s20, s20, s21
    s_lshl_b32 s20, s20, 5
    v_add_u32 v10, s20, v8
    s_lshl_b32 s21, s79, 1
    s_lshr_b32 s22, s77, 1
    s_add_u32 s21, s21, s22
    s_lshl_b32 s21, s21, 6
    v_lshl_add_u32 v11, v9, 5, s21
    v_lshl_add_u32 v7, v10, 10, v11
    v_lshlrev_b32 v10, 2, v10""")
    for k in range(2):
        p.v(f"buffer_load_dwordx4 {vr(X+4*k,4)}, v7, s[12:15], 0 offen offset:{16*k}","e")
        p.v(f"buffer_load_dwordx4 {vr(X+8+4*k,4)}, v11, s[8:11], 0 offen offset:{16*k}","e")

def gemm2_finish(p, st, X, poll_y, SC):
    ACC=16
    T=80 if X>=160 else 176
    p(f"v_lshlrev_b32 v6, 4, v1")
    for z in range(1,4):
        p(f"""s_xor_b32 s20, s77, {z}
        s_mul_i32 s21, s20, 12288
        s_cmp_eq_u32 s20, 3
        s_cselect_b32 s21, {RED3-RED}, s21
        s_add_u32 s21, s21, {RED+(z-1)*4096}
        v_add_u32 v{11+z}, s21, v6""")
    for z in range(1,4):
        for k in range(4):
            p.d(f"ds_write_b128 v{11+z}, {vr(ACC+16*z+4*k,4)} offset:{1024*k}","pw")
    st.take(p,3)
    poll_y(p)
    st.take(p,4)
    p.wait(lg="all")
    srd(p, 12, P_WS, 512*4096, YT_OFF)
    p(f"""v_lshrrev_b32 v12, 3, v1
    v_and_b32 v13, 7, v1
    v_lshlrev_b32 v14, 12, v12
    v_lshl_add_u32 v14, v13, 4, v14
    s_lshl_b32 s20, s79, 6
    s_lshl_b32 s21, s77, 4
    s_add_u32 s20, s20, s21
    s_lshl_b32 s20, s20, 12
    s_lshl_b32 s21, s78, 7
    s_add_u32 s20, s20, s21
    s_add_u32 s21, s20, {8*4096}""")
    p.v(f"buffer_load_dwordx4 v[32:35], v14, s[12:15], s20 offen{SC}","y")
    p.v(f"buffer_load_dwordx4 v[36:39], v14, s[12:15], s21 offen{SC}","y")
    p.v(f"buffer_load_dword v{X+16}, v10, s[28:31], 0 offen{SC}","y")
    p(f"""v_mul_u32_u24 v12, {YP}, v12
    v_lshl_add_u32 v12, v13, 4, v12
    s_mul_i32 s20, s77, {16*YP}
    s_add_u32 s20, s20, {YS}
    v_add_u32 v12, s20, v12""")
    p(f"""v_bfe_u32 v13, v1, 2, 2
    v_lshl_add_u32 v13, v9, 4, v13
    v_mul_u32_u24 v13, {YP}, v13
    v_bfe_u32 v14, v1, 4, 1
    v_lshl_add_u32 v13, v14, 5, v13
    v_and_b32 v14, 3, v1
    v_lshl_add_u32 v13, v14, 3, v13
    s_lshr_b32 s20, s77, 1
    s_mul_i32 s20, s20, {32*YP}
    s_and_b32 s21, s77, 1
    s_lshl_b32 s21, s21, 6
    s_add_u32 s20, s20, s21
    s_add_u32 s20, s20, {YS}
    v_add_u32 v13, s20, v13
    s_mul_i32 s20, s77, 12288
    s_cmp_eq_u32 s77, 3
    s_cselect_b32 s20, {RED3-RED}, s20
    s_add_u32 s20, s20, {RED}
    v_add_u32 v14, s20, v6""")
    srd(p, 8, P_OUT, 2048*1024)
    p.wait(vm="all")
    p.d(f"ds_write_b128 v12, v[32:35]","y")
    p.d(f"ds_write_b128 v12, v[36:39] offset:{8*YP}","y")
    p.wait(lg="all")
    p("s_barrier")
    st.take(p,5)
    for j in range(4): p.d(f"ds_read_b64_tr_b16 {vr(40+2*j,2)}, v13 offset:{4*j*YP}","yt")
    for z in range(3):
        for k in range(4):
            p.d(f"ds_read_b128 {vr(T+16*z+4*k,4)}, v14 offset:{4096*z+1024*k}",("r",z))
    A=48; U=T+48; Dd=T+64
    for k in range(8):
        p(f"v_lshlrev_b32 v{U+2*k}, 16, v{X+k}")
        p(f"v_and_b32 v{U+2*k+1}, 0xffff0000, v{X+k}")
        p(f"v_lshlrev_b32 v{Dd+2*k}, 16, v{X+8+k}")
        p(f"v_and_b32 v{Dd+2*k+1}, 0xffff0000, v{X+8+k}")
    p(f"v_mov_b32 v{X+17}, v{X+16}")
    p(f"v_sub_f32 v{X+18}, 1.0, v{X+16}")
    p(f"v_sub_f32 v{X+19}, 1.0, v{X+16}")
    p.wait(lg="yt")
    for k in range(8):
        p(f"v_lshlrev_b32 v{A+2*k}, 16, v{40+k}")
        p(f"v_and_b32 v{A+2*k+1}, 0xffff0000, v{40+k}")
    for k in range(8): p(f"v_pk_fma_f32 {vr(A+2*k,2)}, {vr(U+2*k,2)}, {vr(Dd+2*k,2)}, {vr(A+2*k,2)}")
    for k in range(8): p(f"v_pk_mul_f32 {vr(A+2*k,2)}, {vr(A+2*k,2)}, {vr(X+16,2)}")
    for z in range(3):
        p.wait(lg=[("r",z)])
        for k in range(8): p(f"v_pk_add_f32 {vr(ACC+2*k,2)}, {vr(ACC+2*k,2)}, {vr(T+16*z+2*k,2)}")
    for k in range(8): p(f"v_pk_fma_f32 {vr(A+2*k,2)}, {vr(ACC+2*k,2)}, {vr(X+18,2)}, {vr(A+2*k,2)}")
    for k in range(8): p(f"v_cvt_pk_bf16_f32 v{32+k}, v{A+2*k}, v{A+2*k+1}")
    for k in range(2):
        p(f"buffer_store_dwordx4 {vr(32+4*k,4)}, v7, s[8:11], 0 offen offset:{16*k}")

def build_kb(stamps=False):
    st=Stamps(stamps)
    p=Prog()
    p("s_cmp_ge_u32 s2, 256")
    p("s_cbranch_scc1 B_exit")
    load_args(p)
    st.take(p,0)
    p("""v_lshrrev_b32 v2, 6, v0
    v_and_b32 v1, 63, v0
    v_readfirstlane_b32 s3, v2
    s_and_b32 s62, s2, 7
    s_lshr_b32 s63, s2, 3
    s_mov_b32 s66, s2
    s_and_b32 s77, s3, 3""")
    kb_decode(p)
    p("""s_cmp_lt_u32 s3, 4
    s_cbranch_scc1 B_conv""")
    p("s_waitcnt lgkmcnt(0)")
    gemm2_setup(p)
    p("s_barrier")
    g=Gemm2(p,"")
    for s in range(11): g.ldw(); g.ldh()
    p("s_barrier")
    st.take(p,1)
    X=[None]
    def late(s):
        if s==NSTEP-4:
            pass
    g.run()
    st.take(p,2)
    Xr=160
    gemm2_epi_loads(p, Xr)
    def poll_y(p):
        u=p.uid()
        p(f"""s_lshl_b32 s20, s79, 5
        v_mov_b32 v12, s20""")
        p.label(f"B_poll{u}")
        p(f"""global_load_dword v13, v12, s[{P_DBG}:{P_DBG+1}] sc1
        s_waitcnt vmcnt(0)
        v_readfirstlane_b32 s21, v13
        s_cmp_lt_u32 s21, 32
        s_cbranch_scc0 B_polled{u}
        s_sleep 2
        s_branch B_poll{u}""")
        p.label(f"B_polled{u}")
        p.vm.clear()
    gemm2_finish(p, st, Xr, poll_y, " sc1")
    p("s_waitcnt vmcnt(0)")
    st.take(p,6); st.flush(p,7,0x20000)
    p("s_endpgm")
    q=Prog()
    q.label("B_conv")
    conv_setup(q)
    q("s_waitcnt lgkmcnt(0)")
    conv_ut_load(q, "")
    srd(q, 8, P_WS, 512*KX_CH, KX_OFF)
    q(f"""s_mul_i32 s24, s66, {2*KX_CH}
    s_lshl_b32 s25, s77, 10
    s_add_u32 s24, s24, s25
    s_add_u32 s25, s25, {KXL}""")
    for k in range(5):
        if k==4:
            q("s_cmp_lg_u32 s77, 0"); q("s_cbranch_scc1 B_kxdone")
            q("s_mov_b64 exec, 0xffff")
        q(f"s_add_u32 m0, s25, {4096*k}")
        q(f"s_add_u32 s22, s24, {4096*k}")
        q.v(f"buffer_load_dwordx4 v2, s[8:11], s22 offen lds","kx")
    q("s_mov_b64 exec, -1")
    q.label("B_kxdone")
    q("s_barrier")
    q(f"""v_mov_b32 v12, {LFLAG}
    v_mov_b32 v32, 0
    v_mov_b32 v33, 0""")
    q.d("ds_write_b64 v12, v[32:33]","z"); q.d("ds_write_b64 v12, v[32:33] offset:8","z"); q.d("ds_write_b64 v12, v[32:33] offset:16","z")
    q.vm=["ut"]
    conv_ut_stage(q)
    q.wait(vm="all", lg="all")
    q("s_barrier")
    st.take(q,1)
    conv_main(q, st)
    st.take(q,2)
    conv_finish(q, st, " sc1")
    st.take(q,3)
    q("s_waitcnt vmcnt(0)")
    st.take(q,4)
    lds_last(q, "B_conv_end", 4)
    q(f"""s_lshr_b32 s20, s66, 5
    s_lshl_b32 s20, s20, 5
    v_mov_b32 v12, s20
    v_mov_b32 v13, 1
    s_mov_b64 exec, 1
    global_atomic_add v12, v13, s[{P_DBG}:{P_DBG+1}] sc1
    s_mov_b64 exec, -1""")
    q.label("B_conv_end")
    st.take(q,5); st.take(q,6); st.flush(q,7,0x20000)
    lines=p.L+q.L+["B_exit:","    s_endpgm"]
    return kernel_text("kb_kernel", lines)

class Gemm2R:
    ACC=16
    def __init__(self, p, SC, nreg):
        self.p=p; self.SC=SC; self.pool=Pool(80,22); self.W={}; self.H={}; self.nd=0; self.nw=0; self.nh=0; self.nreg=nreg
    def setup(self):
        p=self.p
        srd(p, 36, P_WS, H_BYTES, H_OFF)
        srd(p, 40, P_WD, 1376*1024)
        p(f"""v_lshlrev_b32 v6, 4, v1
        s_and_b32 s20, s77, 1
        s_lshl_b32 s21, s78, 1
        s_add_u32 s21, s21, s20
        s_mul_i32 s22, s21, {86*1024}
        v_add_u32 v2, s22, v6
        s_xor_b32 s21, s21, 1
        s_mul_i32 s22, s21, {86*1024}
        v_add_u32 v3, s22, v6
        s_mul_i32 s23, s77, {RINGB}
        s_lshr_b32 s20, s77, 1
        s_add_u32 s23, s23, {SB[2]}
        v_lshrrev_b32 v7, 3, v1
        v_bfe_u32 v8, v1, 4, 1
        v_lshlrev_b32 v8, 2, v8
        v_and_b32 v4, 7, v1
        v_xor_b32 v4, v4, v8
        v_lshlrev_b32 v4, 4, v4
        v_lshl_add_u32 v4, v7, 10, v4
        s_lshl_b32 s21, s79, 7
        v_add_u32 v4, s21, v4
        v_lshrrev_b32 v7, 5, v1
        v_bfe_u32 v8, v1, 2, 2
        v_lshl_add_u32 v7, v7, 2, v8
        v_lshlrev_b32 v5, 7, v7
        v_bfe_u32 v7, v1, 3, 1
        v_xor_b32 v7, s20, v7
        v_lshl_add_u32 v5, v7, 6, v5
        v_and_b32 v7, 1, v1
        v_lshl_add_u32 v5, v7, 5, v5
        v_bfe_u32 v7, v1, 4, 1
        v_lshl_add_u32 v5, v7, 4, v5
        v_bfe_u32 v7, v1, 1, 1
        v_lshl_add_u32 v5, v7, 3, v5
        v_add_u32 v5, s23, v5
        v_xor_b32 v9, 64, v5""")
        if MAP2: p("""s_and_b32 s25, s63, 3
        s_lshl_b32 s25, s25, 1
        s_lshr_b32 s24, s63, 2
        s_add_u32 s24, s24, s25""")
        else: p("""s_lshr_b32 s25, s63, 3
        s_lshl_b32 s25, s25, 1
        s_add_u32 s24, s79, s25""")
        p(f"""s_mul_i32 s24, s24, 11
        s_lshr_b32 s24, s24, 2
        s_cmp_ge_u32 s24, {NSTEP}
        s_cselect_b32 s25, {NSTEP}, 0
        s_sub_u32 s24, s24, s25
        s_lshl_b32 s24, s24, 2
        s_add_u32 s24, s24, s77
        s_lshl_b32 s24, s24, 10
        s_mov_b32 s25, s24
        s_lshl_b32 s26, s77, 10""")
    def dma(self):
        p=self.p; s=self.nd; self.nd+=1
        p(f"s_lshl_b32 s27, s24, 4")
        p(f"s_add_u32 m0, s23, {(s%NRING)*2048}")
        p.v(f"buffer_load_dwordx4 v4, s[40:43], s27 offen lds",("d",s))
        p(f"s_add_u32 s27, s27, 8192")
        p(f"s_add_u32 m0, s23, {(s%NRING)*2048+1024}")
        p.v(f"buffer_load_dwordx4 v4, s[40:43], s27 offen lds",("d",s))
        adv(p,24)
    def ldw(self):
        p=self.p; s=self.nw; r=self.pool.get(); self.W[s]=r; self.nw+=1
        p.wait(vm=[("d",s)])
        for dz in range(2):
            for half in range(2):
                p.d(f"ds_read_b64_tr_b16 {vr(r+4*dz+2*half,2)}, v{(5,9)[dz]} offset:{(s%NRING)*2048+half*1024}",("w",s))
    def preload(self, ls=None, hold=None):
        p=self.p
        while self.nd<NRING: self.dma()
        if hold: p(f"v_mov_b32 v20, {hold[0]}")
        for s in range(self.nreg+1):
            if s<self.nreg:
                self.ldw()
                if hold: p.d(f"ds_read_b64 {vr(16+2*(s%2),2)}, v20",("w",s))
            if ls and s%3==0: ls.take(p,f"w{s}")
            if s>=1 and self.nd<NSTEP:
                p.wait(lg=[("w",s-1)])
                if hold:
                    u=p.uid(); f=16+2*((s-1)%2)
                    p(f"""v_readfirstlane_b32 s20, v{f}
                    v_readfirstlane_b32 s21, v{f+1}
                    s_cmp_eq_u32 s20, 0
                    s_cbranch_scc1 go{u}
                    s_cmp_ge_u32 s21, 4
                    s_cbranch_scc1 go{u}""")
                    hold[1](p)
                    p.label(f"go{u}")
                self.dma()
        p.wait(lg="all")
    def ldh(self):
        p=self.p; s=self.nh; r=self.pool.get(); self.H[s]=r; self.nh+=1
        p(f"s_min_u32 s27, s25, {85*1024}")
        p.v(f"buffer_load_dwordx4 {vr(r,4)}, v2, s[36:39], s27 offen{self.SC}",("h",s))
        p.v(f"buffer_load_dwordx4 {vr(r+4,4)}, v3, s[36:39], s27 offen{self.SC}",("h",s))
        adv(p,25)
    def run(self, late=None, depth=99):
        p=self.p
        for s in range(NSTEP):
            p.wait(vm=[("h",s)], lg=[("w",s)])
            w,h=self.W[s],self.H[s]
            for dz in range(2):
                for mz in range(2):
                    a=self.ACC+16*(2*dz+mz)
                    p(f"v_mfma_f32_32x32x16_bf16 {vr(a,16)}, {vr(w+4*dz,4)}, {vr(h+4*mz,4)}, {'0' if s==0 else vr(a,16)}")
            self.pool.put(w); self.pool.put(h)
            for _ in range(2):
                if self.nh<min(NSTEP,s+1+depth): self.ldh()
            if self.nw<NSTEP and self.nw<=s+3: self.ldw()
            if late: late(s)
```

```python
from kb import *
FLG_OFF = 0x1120000
F_EPOCH, F_U = 0, 128
F_H = F_U + 8*16*128
F_Y = F_H + 32*32*128
FLG_BYTES = F_Y + 16*64*128
LNONCE = LFLAG + 32
LCNT_H, LCNT_Y, LCNT_U, LCNT_X = LFLAG+16, LFLAG+20, LFLAG+24, LFLAG+28
LC6, LL7 = LFLAG+40, LFLAG+44
LMARK, LISS = LFLAG+48, LFLAG+52
PGA, PTID = 210, 219
SC=" sc1"
SCH=os.environ.get('SCH',' sc1')
NW0 = 17
PFS = int(os.environ.get('PFS','9'))
HOLD = int(os.environ.get('HOLD','0'))
IDLEPF = int(os.environ.get('IDLEPF','9'))
SCO = os.environ.get('SCO','')
PAUSE = int(os.environ.get('PAUSE','20'))
DEPTH = int(os.environ.get("DEPTH","7"))
YPOLL = int(os.environ.get("YPOLL","15"))
YCHK  = int(os.environ.get("YCHK","18"))

def flag_srd(p, d): srd(p, d, P_WS, FLG_BYTES, FLG_OFF)

def bound(p, lbl):
    p(f"""s_sub_u32 s101, s101, 1
    s_cmp_lt_i32 s101, 0
    s_cbranch_scc1 {lbl}""")

def signal(p, cnt_addr, nwaves, soff_code, soff2=None):
    u=p.uid()
    p(f"""v_mov_b32 v12, {cnt_addr}
    v_mov_b32 v14, 1
    s_mov_b64 exec, 1
    ds_add_rtn_u32 v13, v12, v14
    ds_read_b64 v[10:11], v12 offset:{LNONCE-cnt_addr}
    s_waitcnt lgkmcnt(0)
    v_readfirstlane_b32 s24, v13
    s_cmp_lg_u32 s24, {nwaves-1}
    s_cbranch_scc1 sig{u}""")
    p(soff_code)
    flag_srd(p, 28)
    p(f"""v_mov_b32 v12, 0
    buffer_store_dwordx2 v[10:11], v12, s[28:31], s20 offen sc1""")
    if soff2:
        p(soff2.replace("SKIP",f"sig{u}"))
        p("buffer_store_dwordx2 v[10:11], v12, s[28:31], s20 offen sc1")
    p.label(f"sig{u}")
    p("s_mov_b64 exec, -1")

def signal1(p, soff_code):
    p(soff_code)
    p("""v_mov_b32 v10, s18
    v_mov_b32 v11, s19
    v_mov_b32 v12, 0
    s_mov_b64 exec, 1
    buffer_store_dwordx2 v[10:11], v12, s[28:31], s22 offen sc1
    s_mov_b64 exec, -1""")

def tag_publish(p):
    u=p.uid()
    p(f"""s_lshl_b32 s20, s2, 3
    s_add_u32 s20, s20, s3
    s_cmp_lg_u32 s20, {240*8+4}
    s_cbranch_scc1 notag{u}""")
    flag_srd(p, 28)
    p(f"""v_mov_b32 v2, 0
    s_mov_b64 exec, 1
    buffer_load_dwordx2 v[4:5], v2, s[28:31], 0 offen sc1
    s_waitcnt vmcnt(0)
    v_add_co_u32 v4, vcc, 1, v4
    v_addc_co_u32 v5, vcc, 0, v5, vcc
    v_or_b32 v5, 0x40000000, v5
    global_store_dwordx2 v2, v[4:5], s[{P_DBG}:{P_DBG+1}] sc1
    buffer_store_dwordx2 v[4:5], v2, s[28:31], 0 offen sc1
    s_waitcnt vmcnt(0)
    s_mov_b64 exec, -1""")
    p.label(f"notag{u}")

def tag_fetch(p):
    u=p.uid()
    p.label(f"tag{u}")
    p(f"""v_readfirstlane_b32 s19, v5
    s_cmp_lg_u32 s19, 0
    s_cbranch_scc1 tagok{u}""")
    bound(p, f"tagok{u}")
    p(f"""s_sleep 4
    global_load_dwordx2 v[4:5], v2, s[{P_DBG}:{P_DBG+1}] sc1
    s_waitcnt vmcnt(0)
    s_branch tag{u}
tagok{u}:
    v_mov_b32 v3, {LNONCE}
    ds_write_b64 v3, v[4:5]
    s_waitcnt lgkmcnt(0)""")

def tag_from_lds(p):
    p(f"""v_mov_b32 v12, {LNONCE}
    ds_read_b64 v[10:11], v12
    s_waitcnt lgkmcnt(0)
    v_readfirstlane_b32 s18, v10
    v_readfirstlane_b32 s19, v11""")

def wd_prefetch(p):
    srd(p, 28, P_WD, 1376*1024)
    p(f"""s_and_b32 s20, s77, 1
    s_mul_i32 s20, s20, 192
    v_add_u32 v44, s20, v1
    v_lshlrev_b32 v44, 7, v44
    s_mul_i32 s20, s63, {43*1024}
    v_min_u32 v45, {343*128}, v44""")
    for k in range(3):
        if k: p(f"v_add_u32 v44, {64*128}, v44"); p(f"v_min_u32 v45, {343*128}, v44")
        p.v(f"buffer_load_dword v47, v45, s[28:31], s20 offen","pf")

def side_ut(p, s):
    u=p.uid()
    TR=48
    p(f"""s_lshr_b32 s20, s65, 2
    s_cmp_lg_u32 s20, {s}
    s_cbranch_scc1 A_nout{u}
    v_lshrrev_b32 v44, 4, v1
    v_bfe_u32 v45, v1, 2, 2
    v_bfe_u32 v46, v1, 1, 1
    v_lshlrev_b32 v44, 4, v44
    v_lshl_add_u32 v44, v46, 3, v44
    v_add_u32 v44, v44, v45
    v_bfe_u32 v45, v44, 1, 3
    v_lshlrev_b32 v44, 7, v44
    v_lshl_add_u32 v44, v45, 4, v44
    v_and_b32 v45, 1, v1
    v_lshl_add_u32 v44, v45, 3, v44
    s_and_b32 s20, s77, 1
    s_lshl_b32 s21, s20, 13
    s_add_u32 s21, s21, {SB[s%3]+XO}
    v_add_u32 v44, s21, v44""")
    for cg in range(8):
        for half in range(2):
            p(f"v_xor_b32 v{186+(2*cg+half)%4}, {(cg<<4)^(half*32)}, v44")
            p(f"ds_read_b64_tr_b16 {vr(TR+4*cg+2*half,2)}, v{186+(2*cg+half)%4} offset:{half*512}")
    srd(p, 28, P_WS, 512*4096, UT_OFF)
    p(f"""v_and_b32 v45, 7, v1
    v_lshlrev_b32 v45, 12, v45
    v_lshrrev_b32 v46, 3, v1
    v_lshl_add_u32 v45, v46, 4, v45
    s_lshl_b32 s20, s20, 7
    s_lshl_b32 s21, s64, 8
    s_add_u32 s20, s20, s21
    s_add_u32 s21, s76, {s}
    s_and_b32 s21, s21, 7
    s_lshl_b32 s21, s21, 18
    s_add_u32 s20, s20, s21
    s_waitcnt lgkmcnt(0)""")
    for cg in range(8):
        p(f"buffer_store_dwordx4 {vr(TR+4*cg,4)}, v45, s[28:31], s20 offen sc1")
        if cg<7: p(f"s_add_u32 s20, s20, {8*4096}")
    p.label(f"A_nout{u}")

def early_check(p):
    u=p.uid()
    p(f"s_waitcnt vmcnt(0)")
    p.label(f"chk{u}")
    p(f"""v_cmp_ne_u64 vcc, s[18:19], v[22:23]
    s_and_b32 s20, vcc_lo, 0xffff
    s_cbranch_scc0 ok{u}""")
    bound(p, f"ok{u}")
    p(f"""s_sleep 8
    buffer_load_dwordx2 v[22:23], v15, s[28:31], s17 offen sc1
    s_waitcnt vmcnt(0)
    s_branch chk{u}""")
    p.label(f"ok{u}")

def lds_wait(p, addr, val):
    u=p.uid()
    p(f"v_mov_b32 v12, {addr}")
    p.label(f"lw{u}")
    p(f"""ds_read_b32 v13, v12
    s_waitcnt lgkmcnt(0)
    v_readfirstlane_b32 s22, v13
    s_cmp_ge_u32 s22, {val}
    s_cbranch_scc1 lwok{u}""")
    bound(p, f"lwok{u}")
    p(f"s_branch lw{u}")
    p.label(f"lwok{u}")

def lds_inc(p, addr):
    p(f"""s_mov_b64 exec, 1
    v_mov_b32 v12, {addr}
    v_mov_b32 v13, 1
    ds_add_u32 v12, v13
    s_mov_b64 exec, -1""")

def last_sync(p):
    lds_inc(p, LC6)
    lds_wait(p, LL7, 2)

def f_helper(p, st, ls):
    p.label("A_helper")
    ls.take(p,"entry")
    p.vm=["kp"]*5
    loader_srds(p)
    p(f"""v_mov_b32 v2, {LFLAG}
    v_mov_b32 v4, 0
    v_mov_b32 v5, 0""")
    for k in (0,1,2,3,5,6): p.d(f"ds_write_b64 v2, v[4:5] offset:{8*k}","z")
    p("s_lshl_b32 s26, s77, 1")
    loader_setup(p, 26, 236, 240, 72, 73)
    p("s_add_u32 s26, s26, 1")
    loader_setup(p, 26, 244, 248, 16, 17)
    p(f"s_mul_i32 s23, s77, {TBL}")
    sets=((236,240,72,73),(244,248,16,17))
    kgen_compute(p, 23, None, None)
    ls.take(p,"kgen")
    kb_decode(p)
    p("""s_cmp_ge_u32 s77, 2
    s_cbranch_scc1 A_side""")
    n0=ls.n
    p("s_cmp_eq_u32 s65, 15")
    p("s_cbranch_scc1 A_noload")
    for s in range(NST-1):
        if s>=2: p.wait(vm=[("st",s)])
        ls.take(p,f"pre{s}")
        p("s_barrier")
        ls.take(p,f"B{s}")
        if s+2<NST: ka_issue(p, s+2, sets)
        if s==PFS: wd_prefetch(p)
        if s==5: g=Gemm2R(p,SC,NW0); g.setup()
    p.wait(vm=[("st",7)])
    p.label("A_ldone")
    lds_inc(p, LL7)
    ls.take(p,"L7")
    for _ in range(NRING): g.dma()
    p("s_branch A_gemm2")
    p.label("A_noload")
    for s in range(NST-1): p("s_barrier")
    g=Gemm2R(p,SC,NW0); g.setup()
    p("s_branch A_ldone")
    n1=ls.n
    p.label("A_side")
    ls.n=n0
    p.vm.clear()
    p("v_mov_b32 v2, 0")
    p(f"global_load_dwordx2 v[4:5], v2, s[{P_DBG}:{P_DBG+1}] sc1")
    for s in range(NST-1):
        ls.take2(p)
        p("s_barrier")
        ls.take2(p)
        if s<2: side_ut(p, s)
        if s==2:
            p("s_waitcnt vmcnt(0)")
            tag_fetch(p)
            u=p.uid()
            p(f"""s_cmp_ge_u32 s65, 8
            s_cbranch_scc1 nosig{u}""")
            signal(p, LCNT_U, 2, f"""s_lshr_b32 s20, s65, 2
            s_add_u32 s20, s20, s76
            s_and_b32 s20, s20, 7
            s_lshl_b32 s20, s20, 11
            s_lshl_b32 s21, s64, 7
            s_add_u32 s20, s20, s21
            s_add_u32 s20, s20, {F_U}""")
            p.label(f"nosig{u}")
        if s==5:
            tag_from_lds(p)
            flag_srd(p, 28)
            p(f"""v_and_b32 v15, 15, v1
            v_lshlrev_b32 v15, 7, v15
            s_lshr_b32 s17, s66, 5
            s_lshl_b32 s17, s17, 11
            s_add_u32 s17, s17, {F_U}""")
            u=p.uid()
            p(f"""s_cmp_lg_u32 s65, 15
            s_cbranch_scc1 nopause{u}
            s_sleep {PAUSE}""")
            p.label(f"nopause{u}")
            p("buffer_load_dwordx2 v[22:23], v15, s[28:31], s17 offen sc1")
        if s==4: g=Gemm2R(p,SC,NW0); g.setup()
    early_check(p)
    ls.take2(p)
    srd(p, 12, P_WS, 512*4096, UT_OFF)
    p(f"""s_lshl_b32 s20, s66, 1
    s_and_b32 s21, s77, 1
    s_add_u32 s20, s20, s21
    s_lshl_b32 s20, s20, 12""")
    p.lg.clear(); p.vm.clear()
    for k in range(4):
        p.v(f"buffer_load_dwordx4 {vr(64+4*k,4)}, v6, s[12:15], s20 offen offset:{1024*k}{SC}","ut")
    for _ in range(NRING): g.dma()
    lds_wait(p, LC6, 4)
    p(f"""s_and_b32 s21, s77, 1
    s_mul_i32 s20, s21, {UTW}
    s_add_u32 s20, s20, {UTL}
    v_add_u32 v7, s20, v6
    v_mov_b32 v16, 0
    v_mov_b32 v17, 0
    v_mov_b32 v18, 0
    v_mov_b32 v19, 0""")
    p.d("ds_write_b128 v7, v[16:19]","z")
    p.wait(vm="ut")
    for k in range(4): p.d(f"ds_write_b128 v7, {vr(64+4*k,4)} offset:{480+1024*k}","z")
    p.wait(lg="all")
    lds_inc(p, LCNT_X)
    ls.n=n1
    p.label("A_gemm2")
    p.vm=[("d",s) for s in range(NRING) for _ in range(2)]
    tag_from_lds(p)
    flag_srd(p, 28)
    p(f"""v_lshlrev_b32 v15, 7, v1
    v_min_u32 v14, {29*128}, v15
    s_lshl_b32 s16, s78, 12
    s_add_u32 s16, s16, {F_H}
    s_lshl_b32 s17, s79, 1
    s_lshr_b32 s20, s78, 4
    s_add_u32 s17, s17, s20
    s_lshl_b32 s17, s17, 13
    s_add_u32 s17, s17, {F_Y}""")
    ls.take(p,'g2in')
    g.preload(ls, (LMARK, lambda p: lds_wait(p, LISS, 4)) if HOLD else None)
    ls.take(p,"wiss")
    u=p.uid()
    p.label(f"ph{u}")
    p(f"""s_mov_b64 exec, 0x3fffffff
    buffer_load_dwordx2 v[20:21], v14, s[28:31], s16 offen sc1
    s_waitcnt vmcnt(0)
    v_cmp_ne_u64 vcc, s[18:19], v[20:21]
    s_mov_b64 exec, -1
    s_cbranch_vccz phok{u}""")
    bound(p, f"phok{u}")
    p(f"""s_sleep 2
    s_branch ph{u}
phok{u}:""")
    p.vm.clear()
    ls.take(p,"hflag")
    while g.pool.free: g.ldh()
    R={}
    def late(s):
        if s==2:
            srd(p, 12, P_U, 2048*1024)
            srd(p, 8, P_DSK, 1024)
            p(f"""v_and_b32 v8, 31, v1
            v_lshrrev_b32 v14, 5, v1
            s_lshl_b32 s20, s78, 1
            s_and_b32 s21, s77, 1
            s_add_u32 s20, s20, s21
            s_lshl_b32 s20, s20, 5
            v_add_u32 v10, s20, v8
            s_lshl_b32 s21, s79, 1
            s_lshr_b32 s22, s77, 1
            s_add_u32 s21, s21, s22
            s_lshl_b32 s22, s21, 17
            s_lshl_b32 s21, s21, 6
            v_lshl_add_u32 v11, v14, 5, s21
            v_lshl_add_u32 v7, v10, 10, v11
            v_lshlrev_b32 v10, 2, v10
            s_lshl_b32 s20, s20, 1
            s_add_u32 s22, s22, s20
            v_lshrrev_b32 v12, 2, v1
            v_lshlrev_b32 v12, 12, v12
            v_and_b32 v13, 3, v1
            v_lshl_add_u32 v12, v13, 4, v12
            v_add_u32 v12, s22, v12
            s_lshl_b32 s20, s77, 11
            s_add_u32 s20, s20, {YS}
            v_add_u32 v8, s20, v6
            v_lshlrev_b32 v13, 3, v13
            v_bfe_u32 v4, v1, 4, 1
            v_lshl_add_u32 v13, v4, 5, v13
            v_bfe_u32 v4, v1, 2, 2
            v_lshl_add_u32 v4, v14, 4, v4
            v_lshl_add_u32 v13, v4, 6, v13
            v_add_u32 v13, s20, v13""")
        if s==3:
            R["x"]=g.pool.get(); R["d"]=g.pool.get()
            for k in range(2):
                p.v(f"buffer_load_dwordx4 {vr(R['x']+4*k,4)}, v7, s[12:15], 0 offen offset:{16*k}","e")
                p.v(f"buffer_load_dwordx4 {vr(R['d']+4*k,4)}, v11, s[8:11], 0 offen offset:{16*k}","e")
        if s==12:
            a=g.pool.get(); b=g.pool.get(); R["t"]=[a,b]; c=g.pool.get()
            p.wait(vm="e")
            for k in range(8):
                t=R["t"][k//4]+2*(k%4)
                p(f"v_lshlrev_b32 v{t}, 16, v{R['x']+k}")
                p(f"v_and_b32 v{t+1}, 0xffff0000, v{R['x']+k}")
                p(f"v_lshlrev_b32 v{c}, 16, v{R['d']+k}")
                p(f"v_and_b32 v{c+1}, 0xffff0000, v{R['d']+k}")
                p(f"v_pk_mul_f32 {vr(t,2)}, {vr(t,2)}, {vr(c,2)}")
            R["g"]=c; R["y"]=R["x"]; g.pool.put(R["d"])
            srd(p, 12, P_WS, 512*4096, YT_OFF)
            srd(p, 8, P_WS, 8192, G_OFF)
            p.v(f"buffer_load_dword v{c}, v10, s[8:11], 0 offen{SC}","g")
        if s==YPOLL:
            p.v(f"buffer_load_dwordx2 {vr(R['g']+4,2)}, v15, s[28:31], s17 offen sc1","py")
        if s==YCHK:
            u=p.uid(); q=vr(R['g']+4,2)
            p.wait(vm="py")
            p.label(f"py{u}")
            p(f"""v_cmp_ne_u64 vcc, s[18:19], {q}
            s_cbranch_vccz pyok{u}""")
            bound(p, f"pyok{u}")
            p(f"""s_sleep 2
            buffer_load_dwordx2 {q}, v15, s[28:31], s17 offen sc1
            s_waitcnt vmcnt(0)
            s_branch py{u}
pyok{u}:""")
            ls.take(p,"yflag")
            p(f"s_mov_b32 s20, {16*4096}")
            p.v(f"buffer_load_dwordx4 {vr(R['y'],4)}, v12, s[12:15], 0 offen{SC}","y")
            p.v(f"buffer_load_dwordx4 {vr(R['y']+4,4)}, v12, s[12:15], s20 offen{SC}","y")
        if s in (0,10,21): ls.take(p,f"g{s}")
    g.run(late=late, depth=DEPTH)
    ACC=16
    p("v_mov_b32 v2, v12"); p("v_mov_b32 v3, v13")
    lds_wait(p, LCNT_X, 6)
    p("v_mov_b32 v12, v2"); p("v_mov_b32 v13, v3")
    for z in range(1,4):
        p(f"""s_xor_b32 s20, s77, {z}
        s_mul_i32 s21, s20, 12288
        s_cmp_eq_u32 s20, 3
        s_cselect_b32 s21, {RED3-RED}, s21
        s_add_u32 s21, s21, {RED+(z-1)*4096}
        v_add_u32 v{1+z}, s21, v6""")
    for z in range(1,4):
        for k in range(4):
            p.d(f"ds_write_b128 v{1+z}, {vr(ACC+16*z+4*k,4)} offset:{1024*k}","pw")
    p(f"""s_mul_i32 s20, s77, 12288
    s_cmp_eq_u32 s77, 3
    s_cselect_b32 s20, {RED3-RED}, s20
    s_add_u32 s20, s20, {RED}
    v_add_u32 v14, s20, v6""")
    srd(p, 8, P_OUT, 2048*1024)
    G0=R["g"]; Y=R["y"]
    p.wait(vm="all")
    p.d(f"ds_write_b128 v8, {vr(Y,4)}","y")
    p.d(f"ds_write_b128 v8, {vr(Y+4,4)} offset:1024","y")
    for j in range(4): p.d(f"ds_read_b64_tr_b16 {vr(Y+2*j,2)}, v13 offset:{256*j}","yt")
    p(f"v_mov_b32 v{G0+1}, v{G0}")
    p(f"v_sub_f32 v{G0+2}, 1.0, v{G0}")
    p(f"v_sub_f32 v{G0+3}, 1.0, v{G0}")
    p.wait(lg="all")
    ls.take(p,"pw")
    p("s_barrier")
    ls.take(p,"bar")
    free=[r for r in g.pool.free]
    T=[free[i] for i in range(6)]; A=[free[6],free[7]]
    for z in range(3):
        for k in range(4):
            p.d(f"ds_read_b128 {vr(T[2*z+k//2]+4*(k%2),4)}, v14 offset:{4096*z+1024*k}",("r",z))
    pa=lambda L,k: vr(L[k//4]+2*(k%4),2)
    for k in range(8):
        a=A[k//4]+2*(k%4)
        p(f"v_lshlrev_b32 v{a}, 16, v{Y+k}")
        p(f"v_and_b32 v{a+1}, 0xffff0000, v{Y+k}")
    for k in range(8): p(f"v_pk_add_f32 {pa(A,k)}, {pa(A,k)}, {pa(R['t'],k)}")
    for k in range(8): p(f"v_pk_mul_f32 {pa(A,k)}, {pa(A,k)}, {vr(G0,2)}")
    for z in range(3):
        p.wait(lg=[("r",z)])
        for k in range(8): p(f"v_pk_add_f32 {vr(ACC+2*k,2)}, {vr(ACC+2*k,2)}, {pa(T[2*z:2*z+2],k)}")
    for k in range(8): p(f"v_pk_fma_f32 {pa(A,k)}, {vr(ACC+2*k,2)}, {vr(G0+2,2)}, {pa(A,k)}")
    for k in range(8): p(f"v_cvt_pk_bf16_f32 v{32+k}, v{A[k//4]+2*(k%4)}, v{A[k//4]+2*(k%4)+1}")
    for k in range(2):
        p(f"buffer_store_dwordx4 {vr(32+4*k,4)}, v7, s[8:11], 0 offen offset:{16*k}{SCO}")
    ls.take(p,"st")
    if os.environ.get("DBGT"):
        p(f"""s_waitcnt vmcnt(0)
        s_memrealtime s[98:99]
        s_cmp_ge_u32 s2, 7
        s_cbranch_scc1 nodbg
        s_cmp_lg_u32 s77, 0
        s_cbranch_scc1 nodbg
        s_waitcnt lgkmcnt(0)
        s_lshl_b32 s20, s2, 3
        s_add_u32 s20, s20, 8
        v_mov_b32 v2, s20
        v_mov_b32 v4, s96
        s_sub_u32 s98, s98, s96
        v_mov_b32 v5, s98
        global_store_dwordx2 v2, v[4:5], s[{P_DBG}:{P_DBG+1}]
nodbg:""")
    if ls.on:
        p("s_waitcnt vmcnt(0)")
        ls.take(p,"end"); ls.flush(p,0x40000)
    p("s_endpgm")

def f_post(p, st):
    p.label("A_post")
    lds_inc(p, LISS)
    p(f"v_lshlrev_b32 v18, 4, v{PTID}")
    def emit(ch,Q,Pp):
        p.d(f"ds_write_b128 v18, {vr(Q,4)} offset:{KXL+ch*KX_CH}","kx")
        p.d(f"ds_write_b128 v18, {vr(Pp,4)} offset:{KXL+ch*KX_CH+KXP_OFF}","kx")
    expand_run2(p, PGA, PTID, 20, emit)
    p(f"""v_lshrrev_b32 v19, 2, v1
    v_mul_u32_u24 v19, {KXP_OFF}, v19
    v_and_b32 v16, 3, v1
    v_lshl_add_u32 v19, v16, 4, v19
    v_mov_b32 v88, 0
    v_mov_b32 v89, 0
    v_mov_b32 v90, 0
    v_mov_b32 v91, 0
    s_mov_b64 exec, 0xffff""")
    p.d(f"ds_write_b128 v19, v[88:91] offset:{KXL+4096}","kx")
    p(f"""s_mov_b64 exec, 1
    v_mov_b32 v12, {LCNT_X}
    v_mov_b32 v14, 1""")
    p.wait(lg="all")
    p("ds_add_u32 v12, v14")
    p("s_mov_b64 exec, -1")
    tag_from_lds(p)
    flag_srd(p, 28)
    conv_setup(p, shared=True)
    p(f"""s_lshl_b32 s22, s64, 1
    s_and_b32 s23, s77, 1
    s_add_u32 s22, s22, s23
    s_lshl_b32 s22, s22, 4
    s_add_u32 s22, s22, s65
    s_lshl_b32 s22, s22, 1
    s_add_u32 s22, s22, s20
    s_lshl_b32 s22, s22, 7
    s_add_u32 s22, s22, {F_H}""")
    p("s_waitcnt vmcnt(0)")
    st.take(p,4)
    signal1(p, "s_nop 0")
    lds_wait(p, LCNT_X, 6)
    p.lg.clear()
    conv_main(p, st)
    st.take(p,5)
    conv_finish(p, st, SC)
    p("s_waitcnt vmcnt(0)")
    st.take(p,6)
    signal1(p, f"""s_lshr_b32 s22, s66, 5
    s_lshl_b32 s22, s22, 1
    s_add_u32 s22, s22, s21
    s_lshl_b32 s22, s22, 5
    s_and_b32 s23, s66, 31
    s_add_u32 s22, s22, s23
    s_lshl_b32 s22, s22, 1
    s_add_u32 s22, s22, s20
    s_lshl_b32 s22, s22, 7
    s_add_u32 s22, s22, {F_Y}""")
    st.take(p,7); st.flush(p,8,0)
    p("s_endpgm")

def build_kf(name, stamps=False):
    st=Stamps(stamps)
    ls=LaneStamps(bool(stamps)); build_kf.ls=ls
    class Sel:
        def __init__(s, m): s.m=m
        def take(s,p,k):
            if k in s.m: st.take(p,s.m[k])
    p=Prog()
    ka_prologue(p, st)
    if os.environ.get("DBGT"): p("s_memrealtime s[96:97]")
    p("s_mov_b32 s101, 0x8000")
    loader_setup(p)
    kgen_loads(p)
    p("""s_waitcnt lgkmcnt(0)
    s_cmp_lt_u32 s3, 4
    s_cbranch_scc1 A_front""")
    tag_publish(p)
    kgen_issue(p)
    p("s_barrier")
    p("s_branch A_helper")
    p.label("A_front")
    p("s_barrier")
    p("""s_cmp_eq_u32 s65, 15
    s_cbranch_scc1 A_idle""")
    ka_front(p, st)
    p(f"v_mov_b32 v{PTID}, v0")
    expand_index(p, PGA, PTID, 20, KSC)
    p("""s_add_u32 s20, s65, s68
    s_cmp_eq_u32 s20, 15
    s_cbranch_scc1 A_gate""")
    c=Prog(); ka_compute(c, Sel({2:1,4:2,5:3}), SCH, last_sync, lambda p: lds_inc(p, LMARK))
    post=Prog(); f_post(post, st)
    g=Prog(); ka_gate(g, Sel({5:3}), SC, last_sync); g("s_branch A_post")
    w=Prog(); w.label("A_idle")
    w(f"v_mov_b32 v{PTID}, v0")
    expand_index(w, PGA, PTID, 20, KSC)
    srd(w, 4, P_WD, 1376*1024)
    w(f"""s_and_b32 s20, s63, 1
    s_lshl_b32 s20, s20, 2
    s_add_u32 s20, s20, s77
    s_lshl_b32 s20, s20, 13
    v_lshlrev_b32 v2, 7, v1""")
    for k in range(7):
        w("s_barrier")
        if k==0 and IDLEPF:
            for i in range(IDLEPF):
                w(f"buffer_load_dword v{16+i}, v2, s[4:7], s20 offen")
                w(f"s_add_u32 s20, s20, {8*8192}")
            st.take(w,1)
            w("s_waitcnt vmcnt(0)")
            st.take(w,2)
    lds_inc(w, LC6)
    w("s_branch A_post")
    h=Prog(); f_helper(h, st, ls)
    lines=p.L+c.L+post.L+g.L+w.L+h.L+["A_exit:","    s_endpgm","ka_end:"]
    return kernel_text(name, lines)
```

```python
from ka import *
LDS_B = 163840
FUSED = bool(os.environ.get("FUSED"))
UTL  = SB[2] if FUSED else RING
UTW  = 4608
NRING = 5
RINGB = NRING*2048
if FUSED: UTL = SB[0]
XCH  = 0 if FUSED else UTL + 4*UTW
RED  = SB[1] if FUSED else XCH + 4*4096
RED3 = SB[0] + 2*UTW + 8192 if FUSED else RED+3*12288
YS   = UTL + 2*UTW if FUSED else RED + 4*12288
YP   = 192
LFLAG = KXL + 2*KX_CH
assert LFLAG+64 <= RING and YS+8192 <= LDS_B and RED3+12288 <= SB[1]
NSTEP = 22
MAP2 = int(os.environ.get('MAP2','0'))

def kb_decode(p):
    if MAP2:
        p("""s_lshr_b32 s78, s62, 1
        s_lshl_b32 s78, s78, 3
        s_lshr_b32 s79, s63, 2
        s_add_u32 s78, s78, s79
        s_and_b32 s79, s62, 1
        s_lshl_b32 s79, s79, 2
        s_and_b32 s20, s63, 3
        s_add_u32 s79, s79, s20""")
        return
    p("""s_and_b32 s78, s62, 1
    s_lshl_b32 s78, s78, 2
    s_lshr_b32 s79, s62, 1
    s_add_u32 s78, s78, s79
    s_lshl_b32 s78, s78, 2
    s_lshr_b32 s79, s63, 3
    s_add_u32 s78, s78, s79
    s_and_b32 s79, s63, 7""")

def conv_setup(p, shared=False):
    FA=4; GAa=8
    p(f"""v_lshlrev_b32 v2, 4, v1
    v_and_b32 v10, 15, v1            ; i / a
    v_lshrrev_b32 v11, 4, v1         ; q
    s_lshr_b32 s20, s77, 1
    s_and_b32 s21, s77, 1            ; half
    v_and_b32 v12, 1, v10
    v_mul_u32_u24 v12, {KXP_OFF}, v12
    v_lshrrev_b32 v13, 1, v10
    v_lshlrev_b32 v14, 2, v11
    v_sub_u32 v13, v14, v13
    v_lshl_add_u32 v12, v13, 2, v12
    s_mul_i32 s22, s20, {KX_CH}
    s_lshl_b32 s23, s21, 8
    s_sub_u32 s22, s22, s23
    s_add_u32 s22, s22, {KXL + 4*(1015-48-128)}
    v_add_u32 v{FA}, s22, v12""")
    for j in range(1,4): p(f"v_subrev_u32 v{FA+j}, {1024*j}, v{FA}")
    p(f"""s_mul_i32 s22, {'s20' if shared else 's77'}, {UTW}
    s_add_u32 s22, s22, {UTL}
    v_add_u32 v9, s22, v2
    s_sub_u32 s22, s22, s23
    s_add_u32 s22, s22, {448-192}
    v_lshlrev_b32 v12, 5, v10
    v_lshl_add_u32 v12, v11, 4, v12
    v_add_u32 v{GAa}, s22, v12""")

def conv_ut_load(p, SC):
    srd(p, 4, P_WS, 512*4096, UT_OFF)
    p(f"""s_lshl_b32 s22, s66, 1
    s_add_u32 s22, s22, s20
    s_lshl_b32 s22, s22, 12""")
    for k in range(4):
        p.v(f"buffer_load_dwordx4 {vr(16+4*k,4)}, v2, s[4:7], s22 offen offset:{1024*k}{SC}","ut")

def conv_ut_stage(p):
    p("""v_mov_b32 v32, 0
    v_mov_b32 v33, 0
    v_mov_b32 v34, 0
    v_mov_b32 v35, 0""")
    p.d("ds_write_b128 v9, v[32:35]","z")
    p.wait(vm="ut")
    for k in range(4):
        p.d(f"ds_write_b128 v9, {vr(16+4*k,4)} offset:{480+1024*k}","z")

def conv_reads(k):
    FA=4; GAa=8; FR=48
    F=lambda b,i: FR+64*b+4*i
    G=lambda b,j: FR+64*b+32+4*j
    b=k%2; L=[]
    for x in range(8):
        o=(3-k)*16+(128 if x%2==0 else 0)
        L.append((f"ds_read2_b32 {vr(F(b,x),2)}, v{FA+x//2} offset0:{o} offset1:{o+1}",("F",k,x)))
        L.append((f"ds_read2_b32 {vr(F(b,x)+2,2)}, v{FA+x//2} offset0:{o+2} offset1:{o+3}",("F",k,x)))
        L.append((f"ds_read_b128 {vr(G(b,x),4)}, v{GAa} offset:{(3-k)*64+512*x}",("G",k,x)))
    return L

def conv_main(p, st, pre=False):
    ACC=16; FR=48
    F=lambda b,i: FR+64*b+4*i
    G=lambda b,j: FR+64*b+32+4*j
    if not pre:
        for ins,tag in conv_reads(0): p.d(ins,tag)
    for k in range(4):
        b=k%2
        nxt = conv_reads(k+1) if k<3 else []
        pairs=sorted([(i,j) for i in range(8) for j in range(8) if i+j<8], key=lambda ij:(max(ij),ij))
        seen=set(); have=-1; z=0
        for n,(i,j) in enumerate(pairs):
            m=max(i,j)
            if m>have:
                p.wait(lg=[("G",k,m)]); have=m
            t=i+j
            c = "0" if (k==0 and t not in seen) else vr(ACC+4*t,4)
            seen.add(t)
            p(f"v_mfma_f32_16x16x32_bf16 {vr(ACC+4*t,4)}, {vr(F(b,i),4)}, {vr(G(b,j),4)}, {c}")
            if n>=8 and z<len(nxt) :
                p.d(*nxt[z]); z+=1
        while z<len(nxt): p.d(*nxt[z]); z+=1

def conv_finish(p, st, SC):
    ACC=16
    u=p.uid()
    p(f"""s_cmp_eq_u32 s21, 0
    s_cbranch_scc1 B_noswap{u}""")
    for k in range(16): p(f"v_swap_b32 v{ACC+k}, v{ACC+16+k}")
    p.label(f"B_noswap{u}")
    p(f"""s_lshl_b32 s22, s77, 12
    s_xor_b32 s23, s22, 4096
    s_add_u32 s22, s22, {XCH}
    s_add_u32 s23, s23, {XCH}
    v_add_u32 v10, s22, v2
    v_add_u32 v11, s23, v2
    s_lshl_b32 s22, s77, 2
    s_add_u32 s22, s22, {LFLAG}
    v_mov_b32 v12, s22
    v_xor_b32 v13, 4, v12
    v_mov_b32 v14, 1""")
    for k in range(4): p(f"ds_write_b128 v10, {vr(ACC+16+4*k,4)} offset:{1024*k}")
    p("s_waitcnt lgkmcnt(0)")
    p("ds_write_b32 v12, v14")
    srd(p, 4, P_WS, 512*4096, YT_OFF)
    p(f"""v_and_b32 v15, 15, v1
    v_lshlrev_b32 v15, 5, v15
    v_bfe_u32 v48, v1, 4, 1
    v_lshl_add_u32 v15, v48, 9, v15
    v_lshrrev_b32 v48, 5, v1
    v_lshl_add_u32 v15, v48, 4, v15
    s_lshl_b32 s22, s66, 1
    s_add_u32 s22, s22, s20
    s_lshl_b32 s22, s22, 12
    s_lshl_b32 s23, s21, 11
    s_add_u32 s22, s22, s23""")
    p.label(f"B_pair{u}")
    p(f"""ds_read_b32 v48, v13
    s_waitcnt lgkmcnt(0)
    v_readfirstlane_b32 s23, v48
    s_cmp_lg_u32 s23, 0
    s_cbranch_scc1 B_pairok{u}
    s_sub_u32 s101, s101, 1
    s_cmp_lt_i32 s101, 0
    s_cbranch_scc0 B_pair{u}
B_pairok{u}:""")
    for k in range(4): p(f"ds_read_b128 {vr(ACC+16+4*k,4)}, v11 offset:{1024*k}")
    p("s_waitcnt lgkmcnt(0)")
    for k in range(8): p(f"v_pk_add_f32 {vr(ACC+2*k,2)}, {vr(ACC+2*k,2)}, {vr(ACC+16+2*k,2)}")
    for t in range(4):
        for z in range(2): p(f"v_cvt_pk_bf16_f32 v{48+2*t+z}, v{ACC+4*t+2*z}, v{ACC+4*t+2*z+1}")
    for pr in range(2):
        for z in range(2): p(f"v_permlane16_swap_b32 v{48+4*pr+z}, v{48+4*pr+2+z}")
    for pr in range(2):
        p(f"buffer_store_dwordx4 {vr(48+4*pr,4)}, v15, s[4:7], s22 offen offset:{1024*pr}{SC}")

def lds_last(p, lbl_skip, cnt):
    p(f"""v_mov_b32 v12, {LFLAG+16}
    v_mov_b32 v14, 1
    s_mov_b64 s[22:23], exec
    s_mov_b64 exec, 1
    ds_add_rtn_u32 v13, v12, v14
    s_waitcnt lgkmcnt(0)
    v_readfirstlane_b32 s24, v13
    s_mov_b64 exec, s[22:23]
    s_cmp_lg_u32 s24, {cnt-1}
    s_cbranch_scc1 {lbl_skip}""")

class Pool:
    def __init__(self, base, n): self.free=[base+8*i for i in range(n)]
    def get(self): return self.free.pop(0)
    def put(self, r): self.free.append(r)

def gemm2_setup(p):
    srd(p, 4, P_WS, H_BYTES, H_OFF)
    srd(p, 8, P_WS, WDF_BYTES, WDF_OFF)
    p(f"""v_lshlrev_b32 v6, 4, v1
    s_and_b32 s20, s77, 1
    s_lshl_b32 s21, s78, 1
    s_add_u32 s21, s21, s20
    s_mul_i32 s22, s21, {86*1024}
    v_add_u32 v2, s22, v6
    s_xor_b32 s21, s21, 1
    s_mul_i32 s22, s21, {86*1024}
    v_add_u32 v3, s22, v6
    s_lshr_b32 s20, s77, 1
    s_lshl_b32 s21, s79, 1
    s_add_u32 s21, s21, s20
    s_mul_i32 s22, s21, {WDF_ST*1024}
    v_add_u32 v4, s22, v6
    s_xor_b32 s21, s21, 1
    s_mul_i32 s22, s21, {WDF_ST*1024}
    v_add_u32 v5, s22, v6""")
    p(f"""s_lshr_b32 s25, s63, 3
    s_lshl_b32 s25, s25, 1
    s_add_u32 s24, s79, s25
    s_mul_i32 s24, s24, 11
    s_lshr_b32 s24, s24, 2
    s_cmp_ge_u32 s24, {NSTEP}
    s_cselect_b32 s25, {NSTEP}, 0
    s_sub_u32 s24, s24, s25
    s_lshl_b32 s24, s24, 2
    s_add_u32 s24, s24, s77
    s_lshl_b32 s24, s24, 10
    s_mov_b32 s25, s24
    s_lshl_b32 s26, s77, 10""")

def adv(p, r):
    p(f"""s_add_u32 s{r}, s{r}, 4096
    s_cmp_ge_u32 s{r}, {88*1024}
    s_cselect_b32 s{r}, s26, s{r}""")

class Gemm2:
    ACC=16
    def __init__(self, p, SC):
        self.p=p; self.SC=SC; self.pool=Pool(80,22); self.W={}; self.H={}; self.nw=0; self.nh=0; self.spill=None
    def ldw(self):
        p=self.p; s=self.nw; r=self.pool.get(); self.W[s]=r; self.nw+=1
        if self.spill:
            a,s0=self.spill
            p.d(f"ds_read_b128 {vr(r,4)}, v{a} offset:{(s-s0)*2048}",("w",s))
            p.d(f"ds_read_b128 {vr(r+4,4)}, v{a} offset:{(s-s0)*2048+1024}",("w",s))
            return
        scw = os.environ.get("SCW", self.SC)
        thr = int(os.environ.get("THR","99"))
        if s>=thr: p.wait(vm=[("w",s-thr)])
        p.v(f"buffer_load_dwordx4 {vr(r,4)}, v4, s[8:11], s24 offen{scw}",("w",s))
        p.v(f"buffer_load_dwordx4 {vr(r+4,4)}, v5, s[8:11], s24 offen{scw}",("w",s))
        adv(p,24)
    def ldh(self):
        p=self.p; s=self.nh; r=self.pool.get(); self.H[s]=r; self.nh+=1
        p(f"s_min_u32 s27, s25, {85*1024}")
        p.v(f"buffer_load_dwordx4 {vr(r,4)}, v2, s[4:7], s27 offen{self.SC}",("h",s))
        p.v(f"buffer_load_dwordx4 {vr(r+4,4)}, v3, s[4:7], s27 offen{self.SC}",("h",s))
        adv(p,25)
    def run(self, late=None, depth=99):
        p=self.p
        for s in range(NSTEP):
            p.wait(vm=[("w",s),("h",s)], lg=[("w",s)])
            w,h=self.W[s],self.H[s]
            for dz in range(2):
                for mz in range(2):
                    a=self.ACC+16*(2*dz+mz)
                    p(f"v_mfma_f32_32x32x16_bf16 {vr(a,16)}, {vr(w+4*dz,4)}, {vr(h+4*mz,4)}, {'0' if s==0 else vr(a,16)}")
            self.pool.put(w); self.pool.put(h)
            if self.spill:
                for _ in range(2):
                    if self.nh<min(NSTEP,s+1+depth): self.ldh()
                if self.nw<NSTEP and self.nw<=s+3: self.ldw()
            else:
                for _ in range(2):
                    if self.nw<NSTEP and (self.nw<=self.nh or self.nh>=NSTEP): self.ldw()
                    elif self.nh<NSTEP: self.ldh()
            if late: late(s)

def gemm2_epi_loads(p, X, gsrd=True):
    srd(p, 12, P_U, 2048*1024)
    srd(p, 8, P_DSK, 1024)
    if gsrd: srd(p, 28, P_WS, 8192, G_OFF)
    p(f"""v_and_b32 v8, 31, v1
    v_lshrrev_b32 v9, 5, v1
    s_lshl_b32 s20, s78, 1
    s_and_b32 s21, s77, 1
    s_add_u32 s20, s20, s21
    s_lshl_b32 s20, s20, 5
    v_add_u32 v10, s20, v8
    s_lshl_b32 s21, s79, 1
    s_lshr_b32 s22, s77, 1
    s_add_u32 s21, s21, s22
    s_lshl_b32 s21, s21, 6
    v_lshl_add_u32 v11, v9, 5, s21
    v_lshl_add_u32 v7, v10, 10, v11
    v_lshlrev_b32 v10, 2, v10""")
    for k in range(2):
        p.v(f"buffer_load_dwordx4 {vr(X+4*k,4)}, v7, s[12:15], 0 offen offset:{16*k}","e")
        p.v(f"buffer_load_dwordx4 {vr(X+8+4*k,4)}, v11, s[8:11], 0 offen offset:{16*k}","e")

def gemm2_finish(p, st, X, poll_y, SC):
    ACC=16
    T=80 if X>=160 else 176
    p(f"v_lshlrev_b32 v6, 4, v1")
    for z in range(1,4):
        p(f"""s_xor_b32 s20, s77, {z}
        s_mul_i32 s21, s20, 12288
        s_cmp_eq_u32 s20, 3
        s_cselect_b32 s21, {RED3-RED}, s21
        s_add_u32 s21, s21, {RED+(z-1)*4096}
        v_add_u32 v{11+z}, s21, v6""")
    for z in range(1,4):
        for k in range(4):
            p.d(f"ds_write_b128 v{11+z}, {vr(ACC+16*z+4*k,4)} offset:{1024*k}","pw")
    st.take(p,3)
    poll_y(p)
    st.take(p,4)
    p.wait(lg="all")
    srd(p, 12, P_WS, 512*4096, YT_OFF)
    p(f"""v_lshrrev_b32 v12, 3, v1
    v_and_b32 v13, 7, v1
    v_lshlrev_b32 v14, 12, v12
    v_lshl_add_u32 v14, v13, 4, v14
    s_lshl_b32 s20, s79, 6
    s_lshl_b32 s21, s77, 4
    s_add_u32 s20, s20, s21
    s_lshl_b32 s20, s20, 12
    s_lshl_b32 s21, s78, 7
    s_add_u32 s20, s20, s21
    s_add_u32 s21, s20, {8*4096}""")
    p.v(f"buffer_load_dwordx4 v[32:35], v14, s[12:15], s20 offen{SC}","y")
    p.v(f"buffer_load_dwordx4 v[36:39], v14, s[12:15], s21 offen{SC}","y")
    p.v(f"buffer_load_dword v{X+16}, v10, s[28:31], 0 offen{SC}","y")
    p(f"""v_mul_u32_u24 v12, {YP}, v12
    v_lshl_add_u32 v12, v13, 4, v12
    s_mul_i32 s20, s77, {16*YP}
    s_add_u32 s20, s20, {YS}
    v_add_u32 v12, s20, v12""")
    p(f"""v_bfe_u32 v13, v1, 2, 2
    v_lshl_add_u32 v13, v9, 4, v13
    v_mul_u32_u24 v13, {YP}, v13
    v_bfe_u32 v14, v1, 4, 1
    v_lshl_add_u32 v13, v14, 5, v13
    v_and_b32 v14, 3, v1
    v_lshl_add_u32 v13, v14, 3, v13
    s_lshr_b32 s20, s77, 1
    s_mul_i32 s20, s20, {32*YP}
    s_and_b32 s21, s77, 1
    s_lshl_b32 s21, s21, 6
    s_add_u32 s20, s20, s21
    s_add_u32 s20, s20, {YS}
    v_add_u32 v13, s20, v13
    s_mul_i32 s20, s77, 12288
    s_cmp_eq_u32 s77, 3
    s_cselect_b32 s20, {RED3-RED}, s20
    s_add_u32 s20, s20, {RED}
    v_add_u32 v14, s20, v6""")
    srd(p, 8, P_OUT, 2048*1024)
    p.wait(vm="all")
    p.d(f"ds_write_b128 v12, v[32:35]","y")
    p.d(f"ds_write_b128 v12, v[36:39] offset:{8*YP}","y")
    p.wait(lg="all")
    p("s_barrier")
    st.take(p,5)
    for j in range(4): p.d(f"ds_read_b64_tr_b16 {vr(40+2*j,2)}, v13 offset:{4*j*YP}","yt")
    for z in range(3):
        for k in range(4):
            p.d(f"ds_read_b128 {vr(T+16*z+4*k,4)}, v14 offset:{4096*z+1024*k}",("r",z))
    A=48; U=T+48; Dd=T+64
    for k in range(8):
        p(f"v_lshlrev_b32 v{U+2*k}, 16, v{X+k}")
        p(f"v_and_b32 v{U+2*k+1}, 0xffff0000, v{X+k}")
        p(f"v_lshlrev_b32 v{Dd+2*k}, 16, v{X+8+k}")
        p(f"v_and_b32 v{Dd+2*k+1}, 0xffff0000, v{X+8+k}")
    p(f"v_mov_b32 v{X+17}, v{X+16}")
    p(f"v_sub_f32 v{X+18}, 1.0, v{X+16}")
    p(f"v_sub_f32 v{X+19}, 1.0, v{X+16}")
    p.wait(lg="yt")
    for k in range(8):
        p(f"v_lshlrev_b32 v{A+2*k}, 16, v{40+k}")
        p(f"v_and_b32 v{A+2*k+1}, 0xffff0000, v{40+k}")
    for k in range(8): p(f"v_pk_fma_f32 {vr(A+2*k,2)}, {vr(U+2*k,2)}, {vr(Dd+2*k,2)}, {vr(A+2*k,2)}")
    for k in range(8): p(f"v_pk_mul_f32 {vr(A+2*k,2)}, {vr(A+2*k,2)}, {vr(X+16,2)}")
    for z in range(3):
        p.wait(lg=[("r",z)])
        for k in range(8): p(f"v_pk_add_f32 {vr(ACC+2*k,2)}, {vr(ACC+2*k,2)}, {vr(T+16*z+2*k,2)}")
    for k in range(8): p(f"v_pk_fma_f32 {vr(A+2*k,2)}, {vr(ACC+2*k,2)}, {vr(X+18,2)}, {vr(A+2*k,2)}")
    for k in range(8): p(f"v_cvt_pk_bf16_f32 v{32+k}, v{A+2*k}, v{A+2*k+1}")
    for k in range(2):
        p(f"buffer_store_dwordx4 {vr(32+4*k,4)}, v7, s[8:11], 0 offen offset:{16*k}")

def build_kb(stamps=False):
    st=Stamps(stamps)
    p=Prog()
    p("s_cmp_ge_u32 s2, 256")
    p("s_cbranch_scc1 B_exit")
    load_args(p)
    st.take(p,0)
    p("""v_lshrrev_b32 v2, 6, v0
    v_and_b32 v1, 63, v0
    v_readfirstlane_b32 s3, v2
    s_and_b32 s62, s2, 7
    s_lshr_b32 s63, s2, 3
    s_mov_b32 s66, s2
    s_and_b32 s77, s3, 3""")
    kb_decode(p)
    p("""s_cmp_lt_u32 s3, 4
    s_cbranch_scc1 B_conv""")
    p("s_waitcnt lgkmcnt(0)")
    gemm2_setup(p)
    p("s_barrier")
    g=Gemm2(p,"")
    for s in range(11): g.ldw(); g.ldh()
    p("s_barrier")
    st.take(p,1)
    X=[None]
    def late(s):
        if s==NSTEP-4:
            pass
    g.run()
    st.take(p,2)
    Xr=160
    gemm2_epi_loads(p, Xr)
    def poll_y(p):
        u=p.uid()
        p(f"""s_lshl_b32 s20, s79, 5
        v_mov_b32 v12, s20""")
        p.label(f"B_poll{u}")
        p(f"""global_load_dword v13, v12, s[{P_DBG}:{P_DBG+1}] sc1
        s_waitcnt vmcnt(0)
        v_readfirstlane_b32 s21, v13
        s_cmp_lt_u32 s21, 32
        s_cbranch_scc0 B_polled{u}
        s_sleep 2
        s_branch B_poll{u}""")
        p.label(f"B_polled{u}")
        p.vm.clear()
    gemm2_finish(p, st, Xr, poll_y, " sc1")
    p("s_waitcnt vmcnt(0)")
    st.take(p,6); st.flush(p,7,0x20000)
    p("s_endpgm")
    q=Prog()
    q.label("B_conv")
    conv_setup(q)
    q("s_waitcnt lgkmcnt(0)")
    conv_ut_load(q, "")
    srd(q, 8, P_WS, 512*KX_CH, KX_OFF)
    q(f"""s_mul_i32 s24, s66, {2*KX_CH}
    s_lshl_b32 s25, s77, 10
    s_add_u32 s24, s24, s25
    s_add_u32 s25, s25, {KXL}""")
    for k in range(5):
        if k==4:
            q("s_cmp_lg_u32 s77, 0"); q("s_cbranch_scc1 B_kxdone")
            q("s_mov_b64 exec, 0xffff")
        q(f"s_add_u32 m0, s25, {4096*k}")
        q(f"s_add_u32 s22, s24, {4096*k}")
        q.v(f"buffer_load_dwordx4 v2, s[8:11], s22 offen lds","kx")
    q("s_mov_b64 exec, -1")
    q.label("B_kxdone")
    q("s_barrier")
    q(f"""v_mov_b32 v12, {LFLAG}
    v_mov_b32 v32, 0
    v_mov_b32 v33, 0""")
    q.d("ds_write_b64 v12, v[32:33]","z"); q.d("ds_write_b64 v12, v[32:33] offset:8","z"); q.d("ds_write_b64 v12, v[32:33] offset:16","z")
    q.vm=["ut"]
    conv_ut_stage(q)
    q.wait(vm="all", lg="all")
    q("s_barrier")
    st.take(q,1)
    conv_main(q, st)
    st.take(q,2)
    conv_finish(q, st, " sc1")
    st.take(q,3)
    q("s_waitcnt vmcnt(0)")
    st.take(q,4)
    lds_last(q, "B_conv_end", 4)
    q(f"""s_lshr_b32 s20, s66, 5
    s_lshl_b32 s20, s20, 5
    v_mov_b32 v12, s20
    v_mov_b32 v13, 1
    s_mov_b64 exec, 1
    global_atomic_add v12, v13, s[{P_DBG}:{P_DBG+1}] sc1
    s_mov_b64 exec, -1""")
    q.label("B_conv_end")
    st.take(q,5); st.take(q,6); st.flush(q,7,0x20000)
    lines=p.L+q.L+["B_exit:","    s_endpgm"]
    return kernel_text("kb_kernel", lines)

class Gemm2R:
    ACC=16
    def __init__(self, p, SC, nreg):
        self.p=p; self.SC=SC; self.pool=Pool(80,22); self.W={}; self.H={}; self.nd=0; self.nw=0; self.nh=0; self.nreg=nreg
    def setup(self):
        p=self.p
        srd(p, 36, P_WS, H_BYTES, H_OFF)
        srd(p, 40, P_WD, 1376*1024)
        p(f"""v_lshlrev_b32 v6, 4, v1
        s_and_b32 s20, s77, 1
        s_lshl_b32 s21, s78, 1
        s_add_u32 s21, s21, s20
        s_mul_i32 s22, s21, {86*1024}
        v_add_u32 v2, s22, v6
        s_xor_b32 s21, s21, 1
        s_mul_i32 s22, s21, {86*1024}
        v_add_u32 v3, s22, v6
        s_mul_i32 s23, s77, {RINGB}
        s_lshr_b32 s20, s77, 1
        s_add_u32 s23, s23, {SB[2]}
        v_lshrrev_b32 v7, 3, v1
        v_bfe_u32 v8, v1, 4, 1
        v_lshlrev_b32 v8, 2, v8
        v_and_b32 v4, 7, v1
        v_xor_b32 v4, v4, v8
        v_lshlrev_b32 v4, 4, v4
        v_lshl_add_u32 v4, v7, 10, v4
        s_lshl_b32 s21, s79, 7
        v_add_u32 v4, s21, v4
        v_lshrrev_b32 v7, 5, v1
        v_bfe_u32 v8, v1, 2, 2
        v_lshl_add_u32 v7, v7, 2, v8
        v_lshlrev_b32 v5, 7, v7
        v_bfe_u32 v7, v1, 3, 1
        v_xor_b32 v7, s20, v7
        v_lshl_add_u32 v5, v7, 6, v5
        v_and_b32 v7, 1, v1
        v_lshl_add_u32 v5, v7, 5, v5
        v_bfe_u32 v7, v1, 4, 1
        v_lshl_add_u32 v5, v7, 4, v5
        v_bfe_u32 v7, v1, 1, 1
        v_lshl_add_u32 v5, v7, 3, v5
        v_add_u32 v5, s23, v5
        v_xor_b32 v9, 64, v5""")
        if MAP2: p("""s_and_b32 s25, s63, 3
        s_lshl_b32 s25, s25, 1
        s_lshr_b32 s24, s63, 2
        s_add_u32 s24, s24, s25""")
        else: p("""s_lshr_b32 s25, s63, 3
        s_lshl_b32 s25, s25, 1
        s_add_u32 s24, s79, s25""")
        p(f"""s_mul_i32 s24, s24, 11
        s_lshr_b32 s24, s24, 2
        s_cmp_ge_u32 s24, {NSTEP}
        s_cselect_b32 s25, {NSTEP}, 0
        s_sub_u32 s24, s24, s25
        s_lshl_b32 s24, s24, 2
        s_add_u32 s24, s24, s77
        s_lshl_b32 s24, s24, 10
        s_mov_b32 s25, s24
        s_lshl_b32 s26, s77, 10""")
    def dma(self):
        p=self.p; s=self.nd; self.nd+=1
        p(f"s_lshl_b32 s27, s24, 4")
        p(f"s_add_u32 m0, s23, {(s%NRING)*2048}")
        p.v(f"buffer_load_dwordx4 v4, s[40:43], s27 offen lds",("d",s))
        p(f"s_add_u32 s27, s27, 8192")
        p(f"s_add_u32 m0, s23, {(s%NRING)*2048+1024}")
        p.v(f"buffer_load_dwordx4 v4, s[40:43], s27 offen lds",("d",s))
        adv(p,24)
    def ldw(self):
        p=self.p; s=self.nw; r=self.pool.get(); self.W[s]=r; self.nw+=1
        p.wait(vm=[("d",s)])
        for dz in range(2):
            for half in range(2):
                p.d(f"ds_read_b64_tr_b16 {vr(r+4*dz+2*half,2)}, v{(5,9)[dz]} offset:{(s%NRING)*2048+half*1024}",("w",s))
    def preload(self, ls=None, hold=None):
        p=self.p
        while self.nd<NRING: self.dma()
        if hold: p(f"v_mov_b32 v20, {hold[0]}")
        for s in range(self.nreg+1):
            if s<self.nreg:
                self.ldw()
                if hold: p.d(f"ds_read_b64 {vr(16+2*(s%2),2)}, v20",("w",s))
            if ls and s%3==0: ls.take(p,f"w{s}")
            if s>=1 and self.nd<NSTEP:
                p.wait(lg=[("w",s-1)])
                if hold:
                    u=p.uid(); f=16+2*((s-1)%2)
                    p(f"""v_readfirstlane_b32 s20, v{f}
                    v_readfirstlane_b32 s21, v{f+1}
                    s_cmp_eq_u32 s20, 0
                    s_cbranch_scc1 go{u}
                    s_cmp_ge_u32 s21, 4
                    s_cbranch_scc1 go{u}""")
                    hold[1](p)
                    p.label(f"go{u}")
                self.dma()
        p.wait(lg="all")
    def ldh(self):
        p=self.p; s=self.nh; r=self.pool.get(); self.H[s]=r; self.nh+=1
        p(f"s_min_u32 s27, s25, {85*1024}")
        p.v(f"buffer_load_dwordx4 {vr(r,4)}, v2, s[36:39], s27 offen{self.SC}",("h",s))
        p.v(f"buffer_load_dwordx4 {vr(r+4,4)}, v3, s[36:39], s27 offen{self.SC}",("h",s))
        adv(p,25)
    def run(self, late=None, depth=99):
        p=self.p
        for s in range(NSTEP):
            p.wait(vm=[("h",s)], lg=[("w",s)])
            w,h=self.W[s],self.H[s]
            for dz in range(2):
                for mz in range(2):
                    a=self.ACC+16*(2*dz+mz)
                    p(f"v_mfma_f32_32x32x16_bf16 {vr(a,16)}, {vr(w+4*dz,4)}, {vr(h+4*mz,4)}, {'0' if s==0 else vr(a,16)}")
            self.pool.put(w); self.pool.put(h)
            if self.nd<NSTEP and self.nd-NRING<self.nw:
                p.wait(lg=[("w",self.nd-NRING)])
                self.dma()
            for _ in range(2):
                if self.nh<min(NSTEP,s+1+depth): self.ldh()
            if self.nw<self.nd and (self.nd<NSTEP or self.nw<=s+3): self.ldw()
            if late: late(s)
```

```python
from kb import *
FLG_OFF = 0x1120000
F_EPOCH, F_U = 0, 128
F_H = F_U + 8*16*128
F_Y = F_H + 32*32*128
FLG_BYTES = F_Y + 16*64*128
LNONCE = LFLAG + 32
LCNT_H, LCNT_Y, LCNT_U, LCNT_X = LFLAG+16, LFLAG+20, LFLAG+24, LFLAG+28
LC6, LL7 = LFLAG+40, LFLAG+44
LMARK, LISS = LFLAG+48, LFLAG+52
PGA, PTID = 210, 219
SC=" sc1"
SCH=os.environ.get('SCH',' sc1')
NW0 = int(os.environ.get('NW0','17'))
PFS = int(os.environ.get('PFS','9'))
HOLD = int(os.environ.get('HOLD','0'))
IDLEPF = int(os.environ.get('IDLEPF','0'))
SCO = os.environ.get('SCO','')
PAUSE = int(os.environ.get('PAUSE','100'))
MALLPF = int(os.environ.get('MALLPF','1'))
DEPTH = int(os.environ.get("DEPTH","7"))
YPOLL = int(os.environ.get("YPOLL","15"))
YCHK  = int(os.environ.get("YCHK","18"))

def flag_srd(p, d): srd(p, d, P_WS, FLG_BYTES, FLG_OFF)

def bound(p, lbl):
    p(f"""s_sub_u32 s101, s101, 1
    s_cmp_lt_i32 s101, 0
    s_cbranch_scc1 {lbl}""")

def signal(p, cnt_addr, nwaves, soff_code, soff2=None):
    u=p.uid()
    p(f"""v_mov_b32 v12, {cnt_addr}
    v_mov_b32 v14, 1
    s_mov_b64 exec, 1
    ds_add_rtn_u32 v13, v12, v14
    ds_read_b64 v[10:11], v12 offset:{LNONCE-cnt_addr}
    s_waitcnt lgkmcnt(0)
    v_readfirstlane_b32 s24, v13
    s_cmp_lg_u32 s24, {nwaves-1}
    s_cbranch_scc1 sig{u}""")
    p(soff_code)
    flag_srd(p, 28)
    p(f"""v_mov_b32 v12, 0
    buffer_store_dwordx2 v[10:11], v12, s[28:31], s20 offen sc1""")
    if soff2:
        p(soff2.replace("SKIP",f"sig{u}"))
        p("buffer_store_dwordx2 v[10:11], v12, s[28:31], s20 offen sc1")
    p.label(f"sig{u}")
    p("s_mov_b64 exec, -1")

def signal1(p, soff_code):
    p(soff_code)
    p("""v_mov_b32 v10, s18
    v_mov_b32 v11, s19
    v_mov_b32 v12, 0
    s_mov_b64 exec, 1
    buffer_store_dwordx2 v[10:11], v12, s[28:31], s22 offen sc1
    s_mov_b64 exec, -1""")

def tag_publish(p):
    u=p.uid()
    p(f"""s_lshl_b32 s20, s2, 3
    s_add_u32 s20, s20, s3
    s_cmp_lg_u32 s20, {240*8+4}
    s_cbranch_scc1 notag{u}""")
    flag_srd(p, 28)
    p(f"""v_mov_b32 v2, 0
    s_mov_b64 exec, 1
    buffer_load_dwordx2 v[4:5], v2, s[28:31], 0 offen sc1
    s_waitcnt vmcnt(0)
    v_add_co_u32 v4, vcc, 1, v4
    v_addc_co_u32 v5, vcc, 0, v5, vcc
    v_or_b32 v5, 0x40000000, v5
    global_store_dwordx2 v2, v[4:5], s[{P_DBG}:{P_DBG+1}] sc1
    buffer_store_dwordx2 v[4:5], v2, s[28:31], 0 offen sc1
    s_waitcnt vmcnt(0)
    s_mov_b64 exec, -1""")
    p.label(f"notag{u}")

def tag_fetch(p):
    u=p.uid()
    p.label(f"tag{u}")
    p(f"""v_readfirstlane_b32 s19, v5
    s_cmp_lg_u32 s19, 0
    s_cbranch_scc1 tagok{u}""")
    bound(p, f"tagok{u}")
    p(f"""s_sleep 4
    global_load_dwordx2 v[4:5], v2, s[{P_DBG}:{P_DBG+1}] sc1
    s_waitcnt vmcnt(0)
    s_branch tag{u}
tagok{u}:
    v_mov_b32 v3, {LNONCE}
    ds_write_b64 v3, v[4:5]
    s_waitcnt lgkmcnt(0)""")

def tag_from_lds(p):
    p(f"""v_mov_b32 v12, {LNONCE}
    ds_read_b64 v[10:11], v12
    s_waitcnt lgkmcnt(0)
    v_readfirstlane_b32 s18, v10
    v_readfirstlane_b32 s19, v11""")

def wd_prefetch(p):
    srd(p, 28, P_WD, 1376*1024)
    p(f"""s_and_b32 s20, s77, 1
    s_mul_i32 s20, s20, 192
    v_add_u32 v44, s20, v1
    v_lshlrev_b32 v44, 7, v44
    s_mul_i32 s20, s63, {43*1024}
    v_min_u32 v45, {343*128}, v44""")
    for k in range(3):
        if k: p(f"v_add_u32 v44, {64*128}, v44"); p(f"v_min_u32 v45, {343*128}, v44")
        p.v(f"buffer_load_dword v47, v45, s[28:31], s20 offen","pf")

def side_ut(p, s):
    u=p.uid()
    TR=48
    p(f"""s_lshr_b32 s20, s65, 2
    s_cmp_lg_u32 s20, {s}
    s_cbranch_scc1 A_nout{u}
    v_lshrrev_b32 v44, 4, v1
    v_bfe_u32 v45, v1, 2, 2
    v_bfe_u32 v46, v1, 1, 1
    v_lshlrev_b32 v44, 4, v44
    v_lshl_add_u32 v44, v46, 3, v44
    v_add_u32 v44, v44, v45
    v_bfe_u32 v45, v44, 1, 3
    v_lshlrev_b32 v44, 7, v44
    v_lshl_add_u32 v44, v45, 4, v44
    v_and_b32 v45, 1, v1
    v_lshl_add_u32 v44, v45, 3, v44
    s_and_b32 s20, s77, 1
    s_lshl_b32 s21, s20, 13
    s_add_u32 s21, s21, {SB[s%3]+XO}
    v_add_u32 v44, s21, v44""")
    for cg in range(8):
        for half in range(2):
            p(f"v_xor_b32 v{186+(2*cg+half)%4}, {(cg<<4)^(half*32)}, v44")
            p(f"ds_read_b64_tr_b16 {vr(TR+4*cg+2*half,2)}, v{186+(2*cg+half)%4} offset:{half*512}")
    srd(p, 28, P_WS, 512*4096, UT_OFF)
    p(f"""v_and_b32 v45, 7, v1
    v_lshlrev_b32 v45, 12, v45
    v_lshrrev_b32 v46, 3, v1
    v_lshl_add_u32 v45, v46, 4, v45
    s_lshl_b32 s20, s20, 7
    s_lshl_b32 s21, s64, 8
    s_add_u32 s20, s20, s21
    s_add_u32 s21, s76, {s}
    s_and_b32 s21, s21, 7
    s_lshl_b32 s21, s21, 18
    s_add_u32 s20, s20, s21
    s_waitcnt lgkmcnt(0)""")
    for cg in range(8):
        p(f"buffer_store_dwordx4 {vr(TR+4*cg,4)}, v45, s[28:31], s20 offen sc1")
        if cg<7: p(f"s_add_u32 s20, s20, {8*4096}")
    p.label(f"A_nout{u}")

def early_check(p):
    u=p.uid()
    p(f"s_waitcnt vmcnt(0)")
    p.label(f"chk{u}")
    p(f"""v_cmp_ne_u64 vcc, s[18:19], v[22:23]
    s_and_b32 s20, vcc_lo, 0xffff
    s_cbranch_scc0 ok{u}""")
    bound(p, f"ok{u}")
    p(f"""s_sleep 8
    buffer_load_dwordx2 v[22:23], v15, s[28:31], s17 offen sc1
    s_waitcnt vmcnt(0)
    s_branch chk{u}""")
    p.label(f"ok{u}")

def lds_wait(p, addr, val):
    u=p.uid()
    p(f"v_mov_b32 v12, {addr}")
    p.label(f"lw{u}")
    p(f"""ds_read_b32 v13, v12
    s_waitcnt lgkmcnt(0)
    v_readfirstlane_b32 s22, v13
    s_cmp_ge_u32 s22, {val}
    s_cbranch_scc1 lwok{u}""")
    bound(p, f"lwok{u}")
    p(f"s_branch lw{u}")
    p.label(f"lwok{u}")

def lds_inc(p, addr):
    p(f"""s_mov_b64 exec, 1
    v_mov_b32 v12, {addr}
    v_mov_b32 v13, 1
    ds_add_u32 v12, v13
    s_mov_b64 exec, -1""")

def last_sync(p):
    lds_inc(p, LC6)
    lds_wait(p, LL7, 2)

def f_helper(p, st, ls):
    p.label("A_helper")
    ls.take(p,"entry")
    p.vm=["kp"]*5
    loader_srds(p)
    p(f"""v_mov_b32 v2, {LFLAG}
    v_mov_b32 v4, 0
    v_mov_b32 v5, 0""")
    for k in (0,1,2,3,5,6): p.d(f"ds_write_b64 v2, v[4:5] offset:{8*k}","z")
    p("s_lshl_b32 s26, s77, 1")
    loader_setup(p, 26, 236, 240, 72, 73)
    p("s_add_u32 s26, s26, 1")
    loader_setup(p, 26, 244, 248, 16, 17)
    p(f"s_mul_i32 s23, s77, {TBL}")
    sets=((236,240,72,73),(244,248,16,17))
    kgen_compute(p, 23, None, None)
    ls.take(p,"kgen")
    kb_decode(p)
    p("""s_cmp_ge_u32 s77, 2
    s_cbranch_scc1 A_side""")
    n0=ls.n
    p("s_cmp_eq_u32 s65, 15")
    p("s_cbranch_scc1 A_noload")
    for s in range(NST-1):
        if s>=2: p.wait(vm=[("st",s)])
        ls.take(p,f"pre{s}")
        p("s_barrier")
        ls.take(p,f"B{s}")
        if s+2<NST: ka_issue(p, s+2, sets)
        if s==PFS: wd_prefetch(p)
        if s==5: g=Gemm2R(p,SC,NW0); g.setup()
    p.wait(vm=[("st",7)])
    p.label("A_ldone")
    lds_inc(p, LL7)
    ls.take(p,"L7")
    for _ in range(NRING): g.dma()
    p("s_branch A_gemm2")
    p.label("A_noload")
    for s in range(NST-1): p("s_barrier")
    g=Gemm2R(p,SC,NW0); g.setup()
    p("s_branch A_ldone")
    n1=ls.n
    p.label("A_side")
    ls.n=n0
    p.vm.clear()
    p("v_mov_b32 v2, 0")
    p(f"global_load_dwordx2 v[4:5], v2, s[{P_DBG}:{P_DBG+1}] sc1")
    for s in range(NST-1):
        ls.take2(p)
        p("s_barrier")
        ls.take2(p)
        if s<2: side_ut(p, s)
        if s==2:
            p("s_waitcnt vmcnt(0)")
            tag_fetch(p)
            u=p.uid()
            p(f"""s_cmp_ge_u32 s65, 8
            s_cbranch_scc1 nosig{u}""")
            signal(p, LCNT_U, 2, f"""s_lshr_b32 s20, s65, 2
            s_add_u32 s20, s20, s76
            s_and_b32 s20, s20, 7
            s_lshl_b32 s20, s20, 11
            s_lshl_b32 s21, s64, 7
            s_add_u32 s20, s20, s21
            s_add_u32 s20, s20, {F_U}""")
            p.label(f"nosig{u}")
        if s==5:
            tag_from_lds(p)
            flag_srd(p, 28)
            p(f"""v_and_b32 v15, 15, v1
            v_lshlrev_b32 v15, 7, v15
            s_lshr_b32 s17, s66, 5
            s_lshl_b32 s17, s17, 11
            s_add_u32 s17, s17, {F_U}""")
            u=p.uid()
            p(f"""s_cmp_lg_u32 s65, 15
            s_cbranch_scc1 nopause{u}
            s_sleep {PAUSE}""")
            p.label(f"nopause{u}")
            p("buffer_load_dwordx2 v[22:23], v15, s[28:31], s17 offen sc1")
        if s==4: g=Gemm2R(p,SC,NW0); g.setup()
    early_check(p)
    ls.take2(p)
    srd(p, 12, P_WS, 512*4096, UT_OFF)
    p(f"""s_lshl_b32 s20, s66, 1
    s_and_b32 s21, s77, 1
    s_add_u32 s20, s20, s21
    s_lshl_b32 s20, s20, 12""")
    p.lg.clear(); p.vm.clear()
    for k in range(4):
        p.v(f"buffer_load_dwordx4 {vr(64+4*k,4)}, v6, s[12:15], s20 offen offset:{1024*k}{SC}","ut")
    for _ in range(NRING): g.dma()
    lds_wait(p, LC6, 4)
    p(f"""s_and_b32 s21, s77, 1
    s_mul_i32 s20, s21, {UTW}
    s_add_u32 s20, s20, {UTL}
    v_add_u32 v7, s20, v6
    v_mov_b32 v16, 0
    v_mov_b32 v17, 0
    v_mov_b32 v18, 0
    v_mov_b32 v19, 0""")
    p.d("ds_write_b128 v7, v[16:19]","z")
    p.wait(vm="ut")
    for k in range(4): p.d(f"ds_write_b128 v7, {vr(64+4*k,4)} offset:{480+1024*k}","z")
    p.wait(lg="all")
    lds_inc(p, LCNT_X)
    ls.n=n1
    p.label("A_gemm2")
    p.vm=[("d",s) for s in range(NRING) for _ in range(2)]
    tag_from_lds(p)
    flag_srd(p, 28)
    p(f"""v_lshlrev_b32 v15, 7, v1
    v_min_u32 v14, {29*128}, v15
    s_lshl_b32 s16, s78, 12
    s_add_u32 s16, s16, {F_H}
    s_lshl_b32 s17, s79, 1
    s_lshr_b32 s20, s78, 4
    s_add_u32 s17, s17, s20
    s_lshl_b32 s17, s17, 13
    s_add_u32 s17, s17, {F_Y}""")
    ls.take(p,'g2in')
    g.preload(ls, (LMARK, lambda p: lds_wait(p, LISS, 4)) if HOLD else None)
    ls.take(p,"wiss")
    u=p.uid()
    p.label(f"ph{u}")
    p(f"""s_mov_b64 exec, 0x3fffffff
    buffer_load_dwordx2 v[20:21], v14, s[28:31], s16 offen sc1
    s_waitcnt vmcnt(0)
    v_cmp_ne_u64 vcc, s[18:19], v[20:21]
    s_mov_b64 exec, -1
    s_cbranch_vccz phok{u}""")
    bound(p, f"phok{u}")
    p(f"""s_sleep 2
    s_branch ph{u}
phok{u}:""")
    p.vm.clear()
    ls.take(p,"hflag")
    while g.pool.free and g.nh<DEPTH: g.ldh()
    R={}
    def late(s):
        if s==2:
            srd(p, 12, P_U, 2048*1024)
            srd(p, 8, P_DSK, 1024)
            tt=g.pool.free[-1]
            p(f"""v_and_b32 v8, 31, v1
            v_lshrrev_b32 v14, 5, v1
            s_lshl_b32 s20, s78, 1
            s_and_b32 s21, s77, 1
            s_add_u32 s20, s20, s21
            s_lshl_b32 s20, s20, 5
            v_add_u32 v10, s20, v8
            s_lshl_b32 s21, s79, 1
            s_lshr_b32 s22, s77, 1
            s_add_u32 s21, s21, s22
            s_lshl_b32 s22, s21, 17
            s_lshl_b32 s21, s21, 6
            v_lshl_add_u32 v11, v14, 5, s21
            v_lshl_add_u32 v7, v10, 10, v11
            v_lshlrev_b32 v10, 2, v10
            s_lshl_b32 s20, s20, 1
            s_add_u32 s22, s22, s20
            v_lshrrev_b32 v12, 2, v1
            v_lshlrev_b32 v12, 12, v12
            v_and_b32 v13, 3, v1
            v_lshl_add_u32 v12, v13, 4, v12
            v_add_u32 v12, s22, v12
            s_lshl_b32 s20, s77, 11
            s_add_u32 s20, s20, {YS}
            v_add_u32 v8, s20, v6
            v_lshlrev_b32 v13, 3, v13
            v_bfe_u32 v{tt}, v1, 4, 1
            v_lshl_add_u32 v13, v{tt}, 5, v13
            v_bfe_u32 v{tt}, v1, 2, 2
            v_lshl_add_u32 v{tt}, v14, 4, v{tt}
            v_lshl_add_u32 v13, v{tt}, 6, v13
            v_add_u32 v13, s20, v13""")
        if s==3:
            R["x"]=g.pool.get(); R["d"]=g.pool.get()
            for k in range(2):
                p.v(f"buffer_load_dwordx4 {vr(R['x']+4*k,4)}, v7, s[12:15], 0 offen offset:{16*k}","e")
                p.v(f"buffer_load_dwordx4 {vr(R['d']+4*k,4)}, v11, s[8:11], 0 offen offset:{16*k}","e")
        if s==12:
            a=g.pool.get(); b=g.pool.get(); R["t"]=[a,b]; c=g.pool.get()
            p.wait(vm="e")
            for k in range(8):
                t=R["t"][k//4]+2*(k%4)
                p(f"v_lshlrev_b32 v{t}, 16, v{R['x']+k}")
                p(f"v_and_b32 v{t+1}, 0xffff0000, v{R['x']+k}")
                p(f"v_lshlrev_b32 v{c}, 16, v{R['d']+k}")
                p(f"v_and_b32 v{c+1}, 0xffff0000, v{R['d']+k}")
                p(f"v_pk_mul_f32 {vr(t,2)}, {vr(t,2)}, {vr(c,2)}")
            R["g"]=c; R["y"]=R["x"]; g.pool.put(R["d"])
            srd(p, 12, P_WS, 512*4096, YT_OFF)
            srd(p, 8, P_WS, 8192, G_OFF)
            p.v(f"buffer_load_dword v{c}, v10, s[8:11], 0 offen{SC}","g")
        if s==YPOLL:
            p.v(f"buffer_load_dwordx2 {vr(R['g']+4,2)}, v15, s[28:31], s17 offen sc1","py")
        if s==YCHK:
            u=p.uid(); q=vr(R['g']+4,2)
            p.wait(vm="py")
            p.label(f"py{u}")
            p(f"""v_cmp_ne_u64 vcc, s[18:19], {q}
            s_cbranch_vccz pyok{u}""")
            bound(p, f"pyok{u}")
            p(f"""s_sleep 2
            buffer_load_dwordx2 {q}, v15, s[28:31], s17 offen sc1
            s_waitcnt vmcnt(0)
            s_branch py{u}
pyok{u}:""")
            ls.take(p,"yflag")
            p(f"s_mov_b32 s20, {16*4096}")
            p.v(f"buffer_load_dwordx4 {vr(R['y'],4)}, v12, s[12:15], 0 offen{SC}","y")
            p.v(f"buffer_load_dwordx4 {vr(R['y']+4,4)}, v12, s[12:15], s20 offen{SC}","y")
        if s in (0,10,21): ls.take(p,f"g{s}")
    g.run(late=late, depth=DEPTH)
    ACC=16
    p("v_mov_b32 v2, v12"); p("v_mov_b32 v3, v13")
    lds_wait(p, LCNT_X, 6)
    p("v_mov_b32 v12, v2"); p("v_mov_b32 v13, v3")
    for z in range(1,4):
        p(f"""s_xor_b32 s20, s77, {z}
        s_mul_i32 s21, s20, 12288
        s_cmp_eq_u32 s20, 3
        s_cselect_b32 s21, {RED3-RED}, s21
        s_add_u32 s21, s21, {RED+(z-1)*4096}
        v_add_u32 v{1+z}, s21, v6""")
    for z in range(1,4):
        for k in range(4):
            p.d(f"ds_write_b128 v{1+z}, {vr(ACC+16*z+4*k,4)} offset:{1024*k}","pw")
    p(f"""s_mul_i32 s20, s77, 12288
    s_cmp_eq_u32 s77, 3
    s_cselect_b32 s20, {RED3-RED}, s20
    s_add_u32 s20, s20, {RED}
    v_add_u32 v14, s20, v6""")
    srd(p, 8, P_OUT, 2048*1024)
    G0=R["g"]; Y=R["y"]
    p.wait(vm="all")
    p.d(f"ds_write_b128 v8, {vr(Y,4)}","y")
    p.d(f"ds_write_b128 v8, {vr(Y+4,4)} offset:1024","y")
    for j in range(4): p.d(f"ds_read_b64_tr_b16 {vr(Y+2*j,2)}, v13 offset:{256*j}","yt")
    p(f"v_mov_b32 v{G0+1}, v{G0}")
    p(f"v_sub_f32 v{G0+2}, 1.0, v{G0}")
    p(f"v_sub_f32 v{G0+3}, 1.0, v{G0}")
    p.wait(lg="all")
    ls.take(p,"pw")
    p("s_barrier")
    ls.take(p,"bar")
    free=[r for r in g.pool.free]
    T=[free[i] for i in range(6)]; A=[free[6],free[7]]
    for z in range(3):
        for k in range(4):
            p.d(f"ds_read_b128 {vr(T[2*z+k//2]+4*(k%2),4)}, v14 offset:{4096*z+1024*k}",("r",z))
    pa=lambda L,k: vr(L[k//4]+2*(k%4),2)
    for k in range(8):
        a=A[k//4]+2*(k%4)
        p(f"v_lshlrev_b32 v{a}, 16, v{Y+k}")
        p(f"v_and_b32 v{a+1}, 0xffff0000, v{Y+k}")
    for k in range(8): p(f"v_pk_add_f32 {pa(A,k)}, {pa(A,k)}, {pa(R['t'],k)}")
    for k in range(8): p(f"v_pk_mul_f32 {pa(A,k)}, {pa(A,k)}, {vr(G0,2)}")
    for z in range(3):
        p.wait(lg=[("r",z)])
        for k in range(8): p(f"v_pk_add_f32 {vr(ACC+2*k,2)}, {vr(ACC+2*k,2)}, {pa(T[2*z:2*z+2],k)}")
    for k in range(8): p(f"v_pk_fma_f32 {pa(A,k)}, {vr(ACC+2*k,2)}, {vr(G0+2,2)}, {pa(A,k)}")
    for k in range(8): p(f"v_cvt_pk_bf16_f32 v{32+k}, v{A[k//4]+2*(k%4)}, v{A[k//4]+2*(k%4)+1}")
    for k in range(2):
        p(f"buffer_store_dwordx4 {vr(32+4*k,4)}, v7, s[8:11], 0 offen offset:{16*k}{SCO}")
    ls.take(p,"st")
    if os.environ.get("DBGT"):
        p(f"""s_waitcnt vmcnt(0)
        s_memrealtime s[98:99]
        s_cmp_ge_u32 s2, 7
        s_cbranch_scc1 nodbg
        s_cmp_lg_u32 s77, 0
        s_cbranch_scc1 nodbg
        s_waitcnt lgkmcnt(0)
        s_lshl_b32 s20, s2, 3
        s_add_u32 s20, s20, 8
        v_mov_b32 v2, s20
        v_mov_b32 v4, s96
        s_sub_u32 s98, s98, s96
        v_mov_b32 v5, s98
        global_store_dwordx2 v2, v[4:5], s[{P_DBG}:{P_DBG+1}]
nodbg:""")
    if ls.on:
        p("s_waitcnt vmcnt(0)")
        ls.take(p,"end"); ls.flush(p,0x40000)
    p("s_endpgm")

def f_post(p, st):
    p.label("A_post")
    lds_inc(p, LISS)
    p(f"v_lshlrev_b32 v18, 4, v{PTID}")
    def emit(ch,Q,Pp):
        p.d(f"ds_write_b128 v18, {vr(Q,4)} offset:{KXL+ch*KX_CH}","kx")
        p.d(f"ds_write_b128 v18, {vr(Pp,4)} offset:{KXL+ch*KX_CH+KXP_OFF}","kx")
    expand_run2(p, PGA, PTID, 20, emit)
    p(f"""v_lshrrev_b32 v19, 2, v1
    v_mul_u32_u24 v19, {KXP_OFF}, v19
    v_and_b32 v16, 3, v1
    v_lshl_add_u32 v19, v16, 4, v19
    v_mov_b32 v88, 0
    v_mov_b32 v89, 0
    v_mov_b32 v90, 0
    v_mov_b32 v91, 0
    s_mov_b64 exec, 0xffff""")
    p.d(f"ds_write_b128 v19, v[88:91] offset:{KXL+4096}","kx")
    p(f"""s_mov_b64 exec, 1
    v_mov_b32 v12, {LCNT_X}
    v_mov_b32 v14, 1""")
    p.wait(lg="all")
    p("ds_add_u32 v12, v14")
    p("s_mov_b64 exec, -1")
    tag_from_lds(p)
    flag_srd(p, 28)
    conv_setup(p, shared=True)
    p(f"""s_lshl_b32 s22, s64, 1
    s_and_b32 s23, s77, 1
    s_add_u32 s22, s22, s23
    s_lshl_b32 s22, s22, 4
    s_add_u32 s22, s22, s65
    s_lshl_b32 s22, s22, 1
    s_add_u32 s22, s22, s20
    s_lshl_b32 s22, s22, 7
    s_add_u32 s22, s22, {F_H}""")
    p("s_waitcnt vmcnt(0)")
    st.take(p,4)
    signal1(p, "s_nop 0")
    lds_wait(p, LCNT_X, 6)
    p.lg.clear()
    conv_main(p, st)
    st.take(p,5)
    conv_finish(p, st, SC)
    p("s_waitcnt vmcnt(0)")
    st.take(p,6)
    signal1(p, f"""s_lshr_b32 s22, s66, 5
    s_lshl_b32 s22, s22, 1
    s_add_u32 s22, s22, s21
    s_lshl_b32 s22, s22, 5
    s_and_b32 s23, s66, 31
    s_add_u32 s22, s22, s23
    s_lshl_b32 s22, s22, 1
    s_add_u32 s22, s22, s20
    s_lshl_b32 s22, s22, 7
    s_add_u32 s22, s22, {F_Y}""")
    st.take(p,7); st.flush(p,8,0)
    p("s_endpgm")

def build_kf(name, stamps=False):
    st=Stamps(stamps)
    ls=LaneStamps(bool(stamps)); build_kf.ls=ls
    class Sel:
        def __init__(s, m): s.m=m
        def take(s,p,k):
            if k in s.m: st.take(p,s.m[k])
    p=Prog()
    ka_prologue(p, st)
    if os.environ.get("DBGT"): p("s_memrealtime s[96:97]")
    p("s_mov_b32 s101, 0x8000")
    loader_setup(p)
    kgen_loads(p)
    p("""s_waitcnt lgkmcnt(0)
    s_cmp_lt_u32 s3, 4
    s_cbranch_scc1 A_front""")
    tag_publish(p)
    kgen_issue(p)
    p("s_barrier")
    p("s_branch A_helper")
    p.label("A_front")
    p("s_barrier")
    p("""s_cmp_eq_u32 s65, 15
    s_cbranch_scc1 A_idle""")
    ka_front(p, st)
    p(f"v_mov_b32 v{PTID}, v0")
    expand_index(p, PGA, PTID, 20, KSC)
    p("""s_add_u32 s20, s65, s68
    s_cmp_eq_u32 s20, 15
    s_cbranch_scc1 A_gate""")
    c=Prog(); ka_compute(c, Sel({2:1,4:2,5:3}), SCH, last_sync, lambda p: lds_inc(p, LMARK))
    post=Prog(); f_post(post, st)
    g=Prog(); ka_gate(g, Sel({5:3}), SC, last_sync); g("s_branch A_post")
    w=Prog(); w.label("A_idle")
    w(f"v_mov_b32 v{PTID}, v0")
    expand_index(w, PGA, PTID, 20, KSC)
    srd(w, 4, P_WD, 1376*1024)
    w(f"""s_and_b32 s20, s63, 1
    s_lshl_b32 s20, s20, 2
    s_add_u32 s20, s20, s77
    s_lshl_b32 s20, s20, 13
    v_lshlrev_b32 v2, 7, v1""")
    for k in range(7):
        w("s_barrier")
        if k==0 and MALLPF:
            w(f"""s_lshl_b32 s21, s64, 2
            s_add_u32 s21, s21, s77
            s_mul_i32 s21, s21, {3*8192}""")
            for i in range(3):
                w(f"buffer_load_dword v{48+i}, v2, s[4:7], s21 offen")
                w(f"s_add_u32 s21, s21, 8192")
        if k==0 and IDLEPF:
            for i in range(IDLEPF):
                w(f"buffer_load_dword v{16+i}, v2, s[4:7], s20 offen")
                w(f"s_add_u32 s20, s20, {8*8192}")
            st.take(w,1)
            w("s_waitcnt vmcnt(0)")
            st.take(w,2)
    lds_inc(w, LC6)
    w("s_branch A_post")
    h=Prog(); f_helper(h, st, ls)
    lines=p.L+c.L+post.L+g.L+w.L+h.L+["A_exit:","    s_endpgm","ka_end:"]
    return kernel_text(name, lines)
```

```python
from common import *
from kgen import *
import os
SLOT = 41216
XO, WGO, WUO = 0, 16384, 16384+12288+32
NST = 8
LDS_A = 163840
KSC  = 0
KXL  = 4*TBL
RING = 34816
SB = [RING, RING+SLOT, RING+2*SLOT]
assert RING+3*SLOT <= LDS_A
ROT = int(os.environ.get('ROT','9'))
PF = int(os.environ.get('PF','1'))
MARKT = int(os.environ.get('MARKT','0'))
MASKW = bool(os.environ.get('FUSED'))
NTX=os.environ.get('NTX',''); NTW=os.environ.get('NTW',''); NTS=int(os.environ.get('NTS','8'))
WDF_ST = 88
LX, LW = 236, 240
GA, TID = 243, 252
if os.environ.get('FUSED'): GA, TID = 48, 57
ET = 20

def ka_prologue(p, st):
    p.label("ka_start")
    p("s_cmp_ge_u32 s2, 256")
    p("s_cbranch_scc1 A_exit")
    load_args(p)
    st.take(p,0)
    p("""v_lshrrev_b32 v2, 6, v0
    v_and_b32 v1, 63, v0
    v_readfirstlane_b32 s3, v2
    s_and_b32 s62, s2, 7
    s_lshr_b32 s63, s2, 3
    s_lshr_b32 s65, s62, 1           ; q
    s_mul_i32 s66, s65, 28
    s_add_u32 s66, s66, s63
    s_lshl_b32 s65, s65, 1
    s_and_b32 s64, s63, 1
    s_add_u32 s64, s64, s65
    s_bfe_u32 s65, s63, 0x10001
    s_add_u32 s65, s65, 14
    s_lshl_b32 s65, s65, 3
    s_add_u32 s65, s65, s64
    s_cmp_ge_u32 s63, 28
    s_cselect_b32 s66, s65, s66
    s_lshr_b32 s65, s66, 3           ; s65 = ft (0..15)
    s_and_b32 s64, s66, 7
    s_and_b32 s66, s62, 1
    s_lshl_b32 s66, s66, 3
    s_add_u32 s64, s64, s66
    s_lshl_b32 s66, s64, 4
    s_add_u32 s66, s66, s65          ; s66 = widx
    s_and_b32 s77, s3, 3             ; s77 = wave & 3""")
    if ROT==8:
        p("""s_and_b32 s76, s65, 3
        s_lshl_b32 s76, s76, 1
        s_add_u32 s76, s76, s64""")
    elif ROT==9:
        p("""s_add_u32 s76, s65, s64
        s_and_b32 s76, s76, 7""")
    elif ROT==4:
        p("""s_add_u32 s76, s65, s64
        s_and_b32 s76, s76, 3
        s_lshl_b32 s76, s76, 1""")

def gelu_tile(p, acc, tmp, dst, cC0, cC1, cONE):
    prs = range(4)
    g = lambda i: vr(acc+2*i,2); u = lambda i: vr(acc+8+2*i,2)
    t = lambda i: vr(tmp+2*i,2); q = lambda i: vr(tmp+8+2*i,2)
    for i in prs: p(f"v_pk_mul_f32 {t(i)}, {g(i)}, {g(i)}")
    for i in prs: p(f"v_pk_fma_f32 {t(i)}, {t(i)}, {vr(cC1,2)}, {vr(cC0,2)}")
    for i in prs: p(f"v_pk_mul_f32 {t(i)}, {t(i)}, {g(i)}")
    for i in range(8): p(f"v_exp_f32 v{tmp+i}, v{tmp+i}")
    for i in prs: p(f"v_pk_mul_f32 {q(i)}, {g(i)}, {u(i)}")
    for i in prs: p(f"v_pk_add_f32 {t(i)}, {t(i)}, {vr(cONE,2)}")
    for i in range(8): p(f"v_rcp_f32 v{tmp+i}, v{tmp+i}")
    for i in prs: p(f"v_pk_mul_f32 {q(i)}, {q(i)}, {t(i)}")
    for i in prs: p(f"v_cvt_pk_bf16_f32 v{dst+i}, v{tmp+8+2*i}, v{tmp+9+2*i}")

def loader_setup(p, si=77, lx=LX, lw=LW, sx=72, sw=73):
    p(f"""v_lshrrev_b32 v2, 3, v1
    v_and_b32 v3, 7, v1              ; pos
    v_lshrrev_b32 v4, 4, v1          ; l>>4
    s_lshl_b32 s68, s64, 7           ; rb*128
    s_lshl_b32 s69, s{si}, 5
    s_add_u32 s68, s68, s69
    v_add_u32 v2, s68, v2
    v_lshlrev_b32 v2, 10, v2
    v_xor_b32 v5, v4, v3""")
    p(f"v_lshl_add_u32 v{lx}, v5, 4, v2")
    p(f"v_xor_b32 v{lx+1}, 64, v{lx}")
    p(f"v_add_u32 v{lx+1}, 8192, v{lx+1}")
    p(f"v_add_u32 v{lx+2}, 16384, v{lx}")
    p(f"v_add_u32 v{lx+3}, 16384, v{lx+1}")
    p(f"""s_mul_i32 s68, s{si}, 192
    s_mul_i32 s69, s65, 192          ; f0*2 bytes
    s_mov_b32 s70, 43691
    v_add_u32 v2, s68, v1""")
    for j in range(3):
        p(f"""v_add_u32 v5, {64*j}, v2
        v_mul_u32_u24 v6, s70, v5
        v_lshrrev_b32 v6, 19, v6         ; k = p/12
        v_mul_u32_u24 v6, {2752-192}, v6
        v_lshl_add_u32 v6, v5, 4, v6
        v_add_u32 v{lw+j}, s69, v6""")
    if MASKW:
        u=p.uid()
        p(f"""s_cmp_lt_u32 s65, 14
        s_cbranch_scc1 nomask{u}
        s_sub_u32 s71, 15, s65
        s_lshl_b32 s71, s71, 2
        v_mov_b32 v4, 0x40000000""")
        for j in range(3):
            p(f"""v_add_u32 v5, {64*j}, v2
            v_mul_u32_u24 v6, s70, v5
            v_lshrrev_b32 v6, 19, v6
            v_mul_u32_u24 v6, 12, v6
            v_sub_u32 v6, v5, v6
            v_cmp_le_u32 vcc, s71, v6
            v_cndmask_b32 v6, 0, v4, vcc
            v_add_u32 v{lw+j}, v6, v{lw+j}""")
        p.label(f"nomask{u}")
    p(f"""s_lshl_b32 s{sx}, s{si}, 12
    s_mul_i32 s{sw}, s{si}, 3072
    s_add_u32 s{sw}, s{sw}, {WGO}""")

def loader_srds(p):
    srd(p, 4, P_U, 2048*1024)
    srd(p, 8, P_WG, 512*2752)
    srd(p, 12, P_WU, 512*2752)

def ka_issue(p, s, sets=((LX,LW,72,73),)):
    slot=SB[s%3]
    p(f"s_add_u32 s74, s76, {s}")
    p(f"s_and_b32 s74, s74, 7")
    p(f"s_mul_i32 s75, s74, {64*2752}")
    p(f"s_lshl_b32 s74, s74, 7")
    for lx,lw,sx,sw in sets:
        for j in range(4):
            p(f"s_add_u32 m0, s{sx}, {slot+XO+j*1024}")
            p.v(f"buffer_load_dwordx4 v{lx+j}, s[4:7], s74 offen{NTX if s<NTS else ''} lds", ("st",s))
    for lx,lw,sx,sw in sets:
        for j in range(3):
            p(f"s_add_u32 m0, s{sw}, {slot+j*1024}")
            p.v(f"buffer_load_dwordx4 v{lw+j}, s[8:11], s75 offen{NTW if s<NTS else ''} lds", ("st",s))
            p(f"s_add_u32 m0, s{sw}, {slot+j*1024+WUO-WGO}")
            p.v(f"buffer_load_dwordx4 v{lw+j}, s[12:15], s75 offen{NTW if s<NTS else ''} lds", ("st",s))

def x_addr(p, XA):
    p(f"""v_and_b32 v2, 31, v1             ; mm
    v_lshrrev_b32 v3, 5, v1          ; h
    v_bfe_u32 v4, v1, 1, 3           ; (mm>>1)&7
    s_lshl_b32 s69, s67, 13
    s_add_u32 s69, s69, {RING}
    v_lshlrev_b32 v5, 7, v2
    v_add_u32 v5, s69, v5""")
    for ks in range(4):
        p(f"v_or_b32 v6, {2*ks}, v3")
        p(f"v_xor_b32 v6, v6, v4")
        p(f"v_lshl_add_u32 v{XA+ks}, v6, 4, v5")
        for s in (1,2):
            p(f"v_add_u32 v{XA+4*s+ks}, {s*SLOT}, v{XA+ks}")

def ka_front(p, st):
    loader_srds(p)
    ka_issue(p, 0)
    p("""s_and_b32 s67, s3, 1
    s_lshr_b32 s68, s3, 1""")

def ka_compute(p, st, SC="", last=None, mark=None):
    ACC=16; FR=112; XA=152; WA=164; TMP=168; CST=184; OUT=192
    acc = lambda t,mt: ACC+(t*2+mt)*16
    fa = lambda s,t: FR+20*s+4*t
    fb = lambda s,mt: FR+20*s+12+4*mt
    p.vm=[("st",0)]*10
    x_addr(p, XA)
    p(f"""v_bfe_u32 v6, v1, 4, 1
    v_mul_u32_u24 v6, {WUO-WGO}, v6
    v_lshlrev_b32 v7, 3, v3          ; 8h
    v_bfe_u32 v8, v1, 2, 2
    v_add_u32 v7, v7, v8
    v_mul_u32_u24 v7, 192, v7
    v_add_u32 v6, v6, v7
    v_and_b32 v7, 3, v1
    v_lshl_add_u32 v6, v7, 3, v6
    s_mul_i32 s69, s68, 96
    s_add_u32 s69, s69, {RING+WGO}
    v_add_u32 v{WA}, s69, v6
    v_add_u32 v{WA+1}, {SLOT}, v{WA}
    v_add_u32 v{WA+2}, {2*SLOT}, v{WA}""")
    c0 = -2*0.7978845608028654*LOG2E
    p(f"""v_mov_b32 v{CST}, {f32(c0)}
    v_mov_b32 v{CST+1}, {f32(c0)}
    v_mov_b32 v{CST+2}, {f32(c0*0.044715)}
    v_mov_b32 v{CST+3}, {f32(c0*0.044715)}
    v_mov_b32 v{CST+4}, 1.0
    v_mov_b32 v{CST+5}, 1.0""")
    ka_issue(p, 1)
    srd(p, 16, P_WS, H_BYTES, H_OFF)
    p("""s_lshl_b32 s70, s64, 2
    s_lshl_b32 s71, s67, 1
    s_add_u32 s70, s70, s71
    s_mul_i32 s70, s70, 86
    s_mul_i32 s71, s65, 6
    s_mul_i32 s72, s68, 3
    s_add_u32 s71, s71, s72
    s_add_u32 s70, s70, s71
    s_lshl_b32 s70, s70, 10
    v_lshlrev_b32 v9, 4, v1""")
    def reads(s, ks, fs):
        slot = s%3
        L=[]
        for mt in range(2):
            L.append(f"ds_read_b128 {vr(fb(fs,mt),4)}, v{XA+4*slot+ks} offset:{XO+4096*mt}")
        for t in range(3):
            for half in range(2):
                L.append(f"ds_read_b64_tr_b16 {vr(fa(fs,t)+2*half,2)}, v{WA+slot} offset:{ks*3072+half*768+t*32}")
        return [L[0],L[2],L[3],L[1],L[4],L[5],L[6],L[7]]
    p.wait(vm=[("st",0)])
    st.take(p,1)
    p("s_barrier")
    st.take(p,2)
    for x in reads(0,0,0): p.d(x,"f")
    n=0
    for s in range(NST):
        for ks in range(4):
            fs = n%2
            p.wait(lg="all", vm=("all" if (s==0 and ks==3) else None))
            nxt=None
            if ks==3:
                if s<NST-1:
                    if last and s==NST-2: last(p)
                    else: p("s_barrier")
                    nxt=reads(s+1,0,1-fs)
                    if s==3: st.take(p,3)
            else: nxt=reads(s,ks+1,1-fs)
            nxt = nxt or []
            k=0
            order=[(0,0),(0,1),(1,0),(1,1),(2,0),(2,1)]
            per=[2,2,2,1,1,0]
            for j,(t,mt) in enumerate(order):
                c = "0" if n==0 else vr(acc(t,mt),16)
                p(f"v_mfma_f32_32x32x16_bf16 {vr(acc(t,mt),16)}, {vr(fa(fs,t),4)}, {vr(fb(fs,mt),4)}, {c}")
                for _ in range(per[j]):
                    if k<len(nxt): p.d(nxt[k],"f"); k+=1
            n+=1
    st.take(p,4)
    def stores(ts):
        for t in ts:
            for mt in range(2):
                p(f"s_add_u32 s72, s70, {(mt*86+t)*1024}")
                p(f"buffer_store_dwordx4 {vr(FR+4*(t*2+mt),4)}, v9, s[16:19], s72 offen{SC}")
    for t in range(3):
        if t==MARKT and mark: mark(p)
        if t==2:
            p("s_cmp_ge_u32 s71, 84")
            p("s_cbranch_scc1 A_compute_short")
        for mt in range(2):
            gelu_tile(p, acc(t,mt), TMP, FR+4*(t*2+mt), CST, CST+2, CST+4)
    stores([2])
    p.label("A_compute_short")
    stores([0,1])
    p.label("A_compute_done")
    st.take(p,5)

def ut_setup(p, UA, oct0):
    p(f"""v_lshrrev_b32 v6, 4, v1
    v_bfe_u32 v7, v1, 2, 2
    v_bfe_u32 v8, v1, 1, 1
    v_lshlrev_b32 v10, 4, v6
    v_lshl_add_u32 v10, v8, 3, v10
    v_add_u32 v10, v10, v7
    v_bfe_u32 v11, v10, 1, 3
    v_xor_b32 v11, s{oct0}, v11
    v_lshlrev_b32 v10, 7, v10
    v_lshl_add_u32 v10, v11, 4, v10
    v_and_b32 v11, 1, v1
    v_lshl_add_u32 v10, v11, 3, v10
    s_lshl_b32 s69, s67, 13
    s_add_u32 s69, s69, {RING+XO}
    v_add_u32 v{UA}, s69, v10
    v_add_u32 v{UA+1}, {SLOT}, v{UA}
    v_add_u32 v{UA+2}, {2*SLOT}, v{UA}
    v_and_b32 v10, 7, v1
    v_lshlrev_b32 v10, 12, v10
    v_lshrrev_b32 v11, 3, v1
    v_lshl_add_u32 v10, v11, 4, v10
    s_lshl_b32 s70, s67, 7
    s_lshl_b32 s71, s64, 8
    s_add_u32 s70, s70, s71
    v_add_u32 v10, s70, v10""")
    srd(p, 28, P_WS, 512*4096, UT_OFF)

def ut_reads(p, s, UA, TR, xors):
    for i,x in enumerate(xors):
        for half in range(2):
            t=168+(2*i+half)%8
            p(f"v_xor_b32 v{t}, {(x<<4)^(half*32)}, v{UA+s%3}")
            p.d(f"ds_read_b64_tr_b16 {vr(TR+4*i+2*half,2)}, v{t} offset:{half*512}","t")

def ut_stores(p, s, TR, xors, oct0, SC):
    p(f"""s_add_u32 s74, s76, {s}
    s_and_b32 s74, s74, 7
    s_lshl_b32 s74, s74, 3""")
    for i,x in enumerate(xors):
        p(f"""s_xor_b32 s75, s{oct0}, {x}
        s_add_u32 s75, s75, s74
        s_lshl_b32 s75, s75, 15""")
        p.v(f"buffer_store_dwordx4 {vr(TR+4*i,4)}, v10, s[28:31], s75 offen{SC}","ut")

def ka_idle(p, st, last, pf=None):
    p.label("A_idle")
    ka_issue(p, 1)
    for s in range(NST):
        if s<2: p(f"s_waitcnt vmcnt({10 if s==0 else 0})")
        if s==NST-1:
            p("s_waitcnt vmcnt(0)")
            last(p)
        else: p("s_barrier")
        if pf: pf(p, s)

def ka_gate(p, st, SC="", last=None):
    GW=16; XA=152; FB=48; AC=80; UA=144; TR=112
    gwreg=lambda s,ks: GW+16*(s%2)+4*ks
    p.label("A_gate")
    p.vm=[("st",0)]*10
    x_addr(p, XA)
    srd(p, 16, P_GW, 1024)
    p("v_lshlrev_b32 v14, 4, v3")
    def gwload(s):
        p(f"s_add_u32 s75, s76, {s}")
        p("s_and_b32 s75, s75, 7")
        p("s_lshl_b32 s75, s75, 7")
        for ks in range(4):
            p.v(f"buffer_load_dwordx4 {vr(gwreg(s,ks),4)}, v14, s[16:19], s75 offen offset:{32*ks}",("gw",s))
    ka_issue(p, 1)
    gwload(0)
    for s in range(NST):
        slot=s%3
        if s<2: p.wait(vm=[("st",s)])
        if last and s==NST-1: last(p)
        else: p("s_barrier")
        for ks in range(4):
            for mt in range(2):
                p.d(f"ds_read_b128 {vr(FB+(ks*2+mt)*4,4)}, v{XA+4*slot+ks} offset:{XO+4096*mt}","f")
        if s<NST-1: gwload(s+1)
        p.wait(vm=[("gw",s)], lg="all")
        for ks in range(4):
            for mt in range(2):
                c = "0" if (s==0 and ks==0) else vr(AC+16*mt,16)
                p(f"v_mfma_f32_32x32x16_bf16 {vr(AC+16*mt,16)}, {vr(gwreg(s,ks),4)}, {vr(FB+(ks*2+mt)*4,4)}, {c}")
    srd(p, 16, P_WS, 8192, G_OFF)
    p(f"""v_lshlrev_b32 v11, 2, v2
    s_lshl_b32 s70, s64, 9
    s_lshl_b32 s71, s67, 8
    s_add_u32 s70, s70, s71""")
    for mt in range(2):
        a=AC+16*mt
        p(f"""v_cvt_pk_bf16_f32 v12, v{a}, v{a}
        v_and_b32 v12, 0xffff0000, v12
        v_mul_f32 v12, {f32(-LOG2E)}, v12
        v_exp_f32 v12, v12
        v_add_f32 v12, 1.0, v12
        v_rcp_f32 v12, v12
        v_cvt_pk_bf16_f32 v12, v12, v12
        v_and_b32 v{6+mt}, 0xffff0000, v12
        buffer_store_dword v{6+mt}, v11, s[16:19], s70 offen offset:{128*mt}{SC}""")
    st.take(p,5)

def ka_ut(p, s, SC=""):
    u=p.uid()
    TR=144
    p(f"""s_lshr_b32 s20, s65, 2
    s_cmp_lg_u32 s20, {s}
    s_cbranch_scc1 A_nout{u}""")
    p(f"""v_lshrrev_b32 v44, 4, v1
    v_bfe_u32 v45, v1, 2, 2
    v_bfe_u32 v46, v1, 1, 1
    v_lshlrev_b32 v44, 4, v44
    v_lshl_add_u32 v44, v46, 3, v44
    v_add_u32 v44, v44, v45
    v_bfe_u32 v45, v44, 1, 3
    v_lshlrev_b32 v44, 7, v44
    v_lshl_add_u32 v44, v45, 4, v44
    v_and_b32 v45, 1, v1
    v_lshl_add_u32 v44, v45, 3, v44
    s_and_b32 s20, s77, 1
    s_lshl_b32 s21, s20, 13
    s_add_u32 s21, s21, {SB[s%3]+XO}
    v_add_u32 v44, s21, v44
    s_lshr_b32 s21, s77, 1
    s_lshl_b32 s21, s21, 6
    v_xor_b32 v44, s21, v44""")
    for cg in range(4):
        for half in range(2):
            p(f"v_xor_b32 v{186+(2*cg+half)%4}, {(cg<<4)^(half*32)}, v44")
            p(f"ds_read_b64_tr_b16 {vr(TR+4*cg+2*half,2)}, v{186+(2*cg+half)%4} offset:{half*512}")
    srd(p, 28, P_WS, 512*4096, UT_OFF)
    p(f"""v_and_b32 v45, 7, v1
    v_lshlrev_b32 v45, 12, v45
    v_lshrrev_b32 v46, 3, v1
    v_lshl_add_u32 v45, v46, 4, v45
    s_lshl_b32 s20, s20, 7
    s_lshl_b32 s21, s21, 11
    s_add_u32 s20, s20, s21
    s_lshl_b32 s21, s64, 8
    s_add_u32 s20, s20, s21
    s_add_u32 s21, s76, {s}
    s_and_b32 s21, s21, 7
    s_lshl_b32 s21, s21, 18
    s_add_u32 s20, s20, s21
    s_waitcnt lgkmcnt(0)""")
    for cg in range(4):
        p(f"buffer_store_dwordx4 {vr(TR+4*cg,4)}, v45, s[28:31], s20 offen{SC}")
        if cg<3: p(f"s_add_u32 s20, s20, {8*4096}")
    p.label(f"A_nout{u}")

def ka_expand(p, fused, ch):
    if not fused:
        srd(p, 28, P_WS, 512*KX_CH, KX_OFF)
        p(f"s_mul_i32 s20, s66, {2*KX_CH}")
    p(f"v_lshlrev_b32 v18, 4, v{TID}")
    def emit(ch,Q,Pp):
        if fused:
            p.d(f"ds_write_b128 v18, {vr(Q,4)} offset:{KXL+ch*KX_CH}","kx")
            p.d(f"ds_write_b128 v18, {vr(Pp,4)} offset:{KXL+ch*KX_CH+KXP_OFF}","kx")
            return
        p(f"s_add_u32 s21, s20, {ch*KX_CH}")
        p.v(f"buffer_store_dwordx4 {vr(Q,4)}, v18, s[28:31], s21 offen","kx")
        p(f"s_add_u32 s21, s20, {ch*KX_CH+KXP_OFF}")
        p.v(f"buffer_store_dwordx4 {vr(Pp,4)}, v18, s[28:31], s21 offen","kx")
    expand_run(p, GA, TID, ET, emit, (ch,))
    if ch==0:
        if fused: p.wait(lg='all')
        return
    u=p.uid()
    p(f"""v_lshrrev_b32 v19, 2, v{TID}
    v_mul_u32_u24 v19, {KXP_OFF}, v19
    v_and_b32 v{ET}, 3, v{TID}
    v_lshl_add_u32 v19, v{ET}, 4, v19
    v_add_u32 v19, 4096, v19
    v_mov_b32 v{ET}, 0
    v_mov_b32 v{ET+1}, 0
    v_mov_b32 v{ET+2}, 0
    v_mov_b32 v{ET+3}, 0
    v_cmp_gt_u32 vcc, 16, v{TID}
    s_and_saveexec_b64 s[22:23], vcc
    s_cbranch_execz A_notail{u}""")
    if fused: p(f"ds_write_b128 v19, {vr(ET,4)} offset:{KXL}")
    else: p(f"buffer_store_dwordx4 {vr(ET,4)}, v19, s[28:31], s20 offen")
    p.label(f"A_notail{u}")
    p("s_mov_b64 exec, s[22:23]")
    if fused: p.wait(lg="all")

def ka_helper(p, st, fused=False, SC=""):
    p.label("A_helper")
    p.vm=["kp"]*5
    loader_srds(p)
    p(f"v_subrev_u32 v{TID}, 256, v0")
    expand_index(p, GA, TID, ET, KSC)
    p(f"s_mul_i32 s23, s77, {TBL}")
    def issue(s):
        u=p.uid()
        p("s_cmp_eq_u32 s65, 15")
        p(f"s_cbranch_scc1 A_noissue{u}")
        ka_issue(p, s)
        p.label(f"A_noissue{u}")
    kgen_compute(p, 23, None, st)
    st.take(p,2)
    for s in range(NST):
        if s>=2: p.wait(vm=[("st",s)])
        if s==4: st.take(p,4)
        p("s_barrier")
        if s+2<NST: issue(s+2)
        if s<2: ka_ut(p, s, SC)
        if s==2: st.take(p,3)
    ka_expand(p, fused, 0)
    ka_expand(p, fused, 1)
    st.take(p,5)

def ka_wdf(p, st, SC=""):
    p.label("A_wdf")
    p(f"""v_lshrrev_b32 v2, 4, v1
    v_and_b32 v3, 15, v1
    v_lshlrev_b32 v10, 10, v2
    v_lshl_add_u32 v10, v3, 4, v10
    s_lshl_b32 s68, s77, 8
    v_add_u32 v10, s68, v10
    s_mul_i32 s72, s77, 24576
    s_add_u32 s72, s72, {RING}
    s_lshl_b32 s68, s64, 14
    s_waitcnt lgkmcnt(0)""")
    srd(p, 4, P_WD, 1376*1024)
    for j in range(6):
        for k in range(4):
            p(f"s_add_u32 s74, s68, {j*16*16384+k*4096}")
            p(f"s_add_u32 m0, s72, {j*4096+k*1024}")
            p.v(f"buffer_load_dwordx4 v10, s[4:7], s74 offen lds",("u",j))
    p("""v_lshrrev_b32 v4, 5, v1
    v_bfe_u32 v5, v1, 2, 2
    v_lshl_add_u32 v4, v4, 2, v5
    v_lshlrev_b32 v4, 8, v4
    v_and_b32 v5, 1, v1
    v_lshl_add_u32 v4, v5, 5, v4
    v_bfe_u32 v5, v1, 4, 1
    v_lshl_add_u32 v4, v5, 4, v4
    v_bfe_u32 v5, v1, 1, 1
    v_lshl_add_u32 v4, v5, 3, v4
    v_add_u32 v4, s72, v4
    v_lshlrev_b32 v9, 4, v1""")
    srd(p, 8, P_WS, 16*WDF_ST*1024, WDF_OFF)
    p(f"""s_mul_i32 s70, s77, {4*WDF_ST}
    s_add_u32 s70, s70, s64
    s_lshl_b32 s70, s70, 10""")
    for j in range(6):
        if j==5:
            p("s_cmp_ge_u32 s64, 8")
            p("s_cbranch_scc1 A_wdf_done")
        p.wait(vm=[("u",j)])
        R=96+16*(j%2)
        for x in range(4):
            for half in range(2):
                p.d(f"ds_read_b64_tr_b16 {vr(R+4*x+2*half,2)}, v4 offset:{j*4096+half*2048+x*64}",("x",x))
        for x in range(4):
            p.wait(lg=[("x",x)])
            p(f"s_add_u32 s74, s70, {(x*WDF_ST+16*j)*1024}")
            p.v(f"buffer_store_dwordx4 {vr(R+4*x,4)}, v9, s[8:11], s74 offen{SC}","o")
    p.label("A_wdf_done")
    st.take(p,5)

def build_ka(stamps=False):
    st=Stamps(stamps)
    p=Prog()
    ka_prologue(p, st)
    if PF:
        p("s_lshl_b32 s29, s63, 3\ns_add_u32 s29, s29, s3\ns_and_b32 s29, s29, 31")
        code_prefetch(p, "ka_start", "ka_end", 29, tmp=226)
    loader_setup(p)
    kgen_loads(p)
    p("""s_waitcnt lgkmcnt(0)
    s_cmp_lt_u32 s3, 4
    s_cbranch_scc1 A_front""")
    kgen_issue(p)
    p("s_barrier")
    p("s_branch A_helper")
    p.label("A_front")
    p("s_barrier")
    p("""s_cmp_eq_u32 s65, 15
    s_cbranch_scc1 A_wdf""")
    ka_front(p, st)
    p("""s_add_u32 s20, s65, s68
    s_cmp_eq_u32 s20, 15
    s_cbranch_scc1 A_gate""")
    parts=[p]
    for fn in (ka_compute, ka_gate, ka_helper, ka_wdf):
        q=Prog(); st.on=stamps; fn(q, st); st.on=stamps
        q("s_waitcnt vmcnt(0)")
        st.take(q,6); st.flush(q,7,0)
        q("s_endpgm")
        parts.append(q)
    lines=sum((q.L for q in parts),[])+["A_exit:","    s_endpgm","ka_end:"]
    return kernel_text("ka_kernel", lines)
```

```python
from kb import *
FLG_OFF = 0x1120000
F_EPOCH, F_U = 0, 128
F_H = F_U + 8*32*128
F_Y = F_H + 32*32*128
FLG_BYTES = F_Y + 16*64*128
LNONCE = LFLAG + 32
LCNT_H, LCNT_Y, LCNT_U, LCNT_X = LFLAG+16, LFLAG+20, LFLAG+24, LFLAG+28
LC6, LL7 = LFLAG+40, LFLAG+44
LMARK, LISS = LFLAG+48, LFLAG+52
PGA, PTID = 210, 219
SC=" sc1"
SCH=os.environ.get('SCH',' sc1')
NW0 = int(os.environ.get('NW0','11'))
PFS = int(os.environ.get('PFS','9'))
HOLD = int(os.environ.get('HOLD','1'))
IDLEPF = int(os.environ.get('IDLEPF','0'))
SCO = os.environ.get('SCO','')
PAUSE = int(os.environ.get('PAUSE','100'))
MALLPF = int(os.environ.get('MALLPF','1'))
DEPTH = int(os.environ.get("DEPTH","7"))
YPOLL = int(os.environ.get("YPOLL","15"))
YCHK  = int(os.environ.get("YCHK","18"))

def flag_srd(p, d): srd(p, d, P_WS, FLG_BYTES, FLG_OFF)

def bound(p, lbl):
    p(f"""s_sub_u32 s101, s101, 1
    s_cmp_lt_i32 s101, 0
    s_cbranch_scc1 {lbl}""")

def signal(p, cnt_addr, nwaves, soff_code, soff2=None):
    u=p.uid()
    p(f"""v_mov_b32 v12, {cnt_addr}
    v_mov_b32 v14, 1
    s_mov_b64 exec, 1
    ds_add_rtn_u32 v13, v12, v14
    ds_read_b64 v[10:11], v12 offset:{LNONCE-cnt_addr}
    s_waitcnt lgkmcnt(0)
    v_readfirstlane_b32 s24, v13
    s_cmp_lg_u32 s24, {nwaves-1}
    s_cbranch_scc1 sig{u}""")
    p(soff_code)
    flag_srd(p, 28)
    p(f"""v_mov_b32 v12, 0
    buffer_store_dwordx2 v[10:11], v12, s[28:31], s20 offen sc1""")
    if soff2:
        p(soff2.replace("SKIP",f"sig{u}"))
        p("buffer_store_dwordx2 v[10:11], v12, s[28:31], s20 offen sc1")
    p.label(f"sig{u}")
    p("s_mov_b64 exec, -1")

def signal1(p, soff_code):
    p(soff_code)
    p("""v_mov_b32 v10, s18
    v_mov_b32 v11, s19
    v_mov_b32 v12, 0
    s_mov_b64 exec, 1
    buffer_store_dwordx2 v[10:11], v12, s[28:31], s22 offen sc1
    s_mov_b64 exec, -1""")

def tag_publish(p):
    u=p.uid()
    p(f"""s_lshl_b32 s20, s2, 3
    s_add_u32 s20, s20, s3
    s_cmp_lg_u32 s20, {240*8+4}
    s_cbranch_scc1 notag{u}""")
    flag_srd(p, 28)
    p(f"""v_mov_b32 v2, 0
    s_mov_b64 exec, 1
    buffer_load_dwordx2 v[4:5], v2, s[28:31], 0 offen sc1
    s_waitcnt vmcnt(0)
    v_add_co_u32 v4, vcc, 1, v4
    v_addc_co_u32 v5, vcc, 0, v5, vcc
    v_or_b32 v5, 0x40000000, v5
    global_store_dwordx2 v2, v[4:5], s[{P_DBG}:{P_DBG+1}] sc1
    buffer_store_dwordx2 v[4:5], v2, s[28:31], 0 offen sc1
    s_waitcnt vmcnt(0)
    s_mov_b64 exec, -1""")
    p.label(f"notag{u}")

def tag_fetch(p):
    u=p.uid()
    p.label(f"tag{u}")
    p(f"""v_readfirstlane_b32 s19, v5
    s_cmp_lg_u32 s19, 0
    s_cbranch_scc1 tagok{u}""")
    bound(p, f"tagok{u}")
    p(f"""s_sleep 4
    global_load_dwordx2 v[4:5], v2, s[{P_DBG}:{P_DBG+1}] sc1
    s_waitcnt vmcnt(0)
    s_branch tag{u}
tagok{u}:
    v_mov_b32 v3, {LNONCE}
    ds_write_b64 v3, v[4:5]
    s_waitcnt lgkmcnt(0)""")

def tag_from_lds(p):
    p(f"""v_mov_b32 v12, {LNONCE}
    ds_read_b64 v[10:11], v12
    s_waitcnt lgkmcnt(0)
    v_readfirstlane_b32 s18, v10
    v_readfirstlane_b32 s19, v11""")

def wd_prefetch(p):
    srd(p, 28, P_WD, 1376*1024)
    p(f"""s_and_b32 s20, s77, 1
    s_mul_i32 s20, s20, 192
    v_add_u32 v44, s20, v1
    v_lshlrev_b32 v44, 7, v44
    s_mul_i32 s20, s63, {43*1024}
    v_min_u32 v45, {343*128}, v44""")
    for k in range(3):
        if k: p(f"v_add_u32 v44, {64*128}, v44"); p(f"v_min_u32 v45, {343*128}, v44")
        p.v(f"buffer_load_dword v47, v45, s[28:31], s20 offen","pf")

def early_check(p):
    u=p.uid()
    p(f"s_waitcnt vmcnt(0)")
    p.label(f"chk{u}")
    p(f"""v_cmp_ne_u64 vcc, s[18:19], v[22:23]
    s_cbranch_vccz ok{u}""")
    bound(p, f"ok{u}")
    p(f"""s_sleep 8
    buffer_load_dwordx2 v[22:23], v15, s[28:31], s17 offen sc1
    s_waitcnt vmcnt(0)
    s_branch chk{u}""")
    p.label(f"ok{u}")

def lds_wait(p, addr, val):
    u=p.uid()
    p(f"v_mov_b32 v12, {addr}")
    p.label(f"lw{u}")
    p(f"""ds_read_b32 v13, v12
    s_waitcnt lgkmcnt(0)
    v_readfirstlane_b32 s22, v13
    s_cmp_ge_u32 s22, {val}
    s_cbranch_scc1 lwok{u}""")
    bound(p, f"lwok{u}")
    p(f"s_branch lw{u}")
    p.label(f"lwok{u}")

def lds_inc(p, addr):
    p(f"""s_mov_b64 exec, 1
    v_mov_b32 v12, {addr}
    v_mov_b32 v13, 1
    ds_add_u32 v12, v13
    s_mov_b64 exec, -1""")

def last_sync(p):
    lds_inc(p, LC6)
    lds_wait(p, LL7, 2)

def f_helper(p, st, ls):
    p.label("A_helper")
    ls.take(p,"entry")
    p.vm=["kp"]*5
    loader_srds(p)
    p(f"""v_mov_b32 v2, {LFLAG}
    v_mov_b32 v4, 0
    v_mov_b32 v5, 0""")
    for k in (0,1,2,3,5,6): p.d(f"ds_write_b64 v2, v[4:5] offset:{8*k}","z")
    p("s_lshl_b32 s26, s77, 1")
    loader_setup(p, 26, 236, 240, 72, 73)
    p("s_add_u32 s26, s26, 1")
    loader_setup(p, 26, 244, 248, 16, 17)
    p(f"s_mul_i32 s23, s77, {TBL}")
    sets=((236,240,72,73),(244,248,16,17))
    kgen_compute(p, 23, None, None)
    ls.take(p,"kgen")
    kb_decode(p)
    p("""s_cmp_ge_u32 s77, 2
    s_cbranch_scc1 A_side""")
    n0=ls.n
    for s in range(NST-1):
        if s>=2: p.wait(vm=[("st",s)])
        ls.take(p,f"pre{s}")
        p("s_barrier")
        ls.take(p,f"B{s}")
        if s+2<NST: ka_issue(p, s+2, sets)
        if s==PFS: wd_prefetch(p)
        if s==5: g=Gemm2R(p,SC,NW0); g.setup()
    p.wait(vm=[("st",7)])
    lds_inc(p, LL7)
    ls.take(p,"L7")
    for _ in range(NRING): g.dma()
    p("s_branch A_gemm2")
    n1=ls.n
    p.label("A_side")
    ls.n=n0
    p.vm.clear()
    p("""s_lshr_b32 s67, s65, 3
    s_and_b32 s23, s77, 1
    s_lshl_b32 s23, s23, 2""")
    ut_setup(p, 144, 23)
    p("v_mov_b32 v2, 0")
    for s in range(NST-1):
        ls.take2(p)
        p("s_barrier")
        ls.take2(p)
        if s==0:
            ut_reads(p, 0, 144, 112, (0,1,2,3))
            p.wait(lg="all")
            ut_stores(p, 0, 112, (0,1,2,3), 23, SC)
            p(f"global_load_dwordx2 v[4:5], v2, s[{P_DBG}:{P_DBG+1}] sc1")
        if s==2:
            p("s_waitcnt vmcnt(0)")
            tag_fetch(p)
            signal(p, LCNT_U, 2, f"""s_lshl_b32 s20, s76, 4
            s_add_u32 s20, s20, s64
            s_lshl_b32 s20, s20, 1
            s_add_u32 s20, s20, s67
            s_lshl_b32 s20, s20, 7
            s_add_u32 s20, s20, {F_U}""")
        if s==5:
            tag_from_lds(p)
            flag_srd(p, 28)
            p(f"""v_and_b32 v15, 31, v1
            v_lshlrev_b32 v15, 7, v15
            s_lshr_b32 s17, s66, 5
            s_lshl_b32 s17, s17, 12
            s_add_u32 s17, s17, {F_U}""")
            p("buffer_load_dwordx2 v[22:23], v15, s[28:31], s17 offen sc1")
        if s==4: g=Gemm2R(p,SC,NW0); g.setup()
    early_check(p)
    ls.take2(p)
    srd(p, 12, P_WS, 512*4096, UT_OFF)
    p(f"""s_lshl_b32 s20, s66, 1
    s_and_b32 s21, s77, 1
    s_add_u32 s20, s20, s21
    s_lshl_b32 s20, s20, 12""")
    p.lg.clear(); p.vm.clear()
    for k in range(4):
        p.v(f"buffer_load_dwordx4 {vr(64+4*k,4)}, v6, s[12:15], s20 offen offset:{1024*k}{SC}","ut")
    for _ in range(NRING): g.dma()
    lds_wait(p, LC6, 4)
    p(f"""s_and_b32 s21, s77, 1
    s_mul_i32 s20, s21, {UTW}
    s_add_u32 s20, s20, {UTL}
    v_add_u32 v7, s20, v6
    v_mov_b32 v16, 0
    v_mov_b32 v17, 0
    v_mov_b32 v18, 0
    v_mov_b32 v19, 0""")
    p.d("ds_write_b128 v7, v[16:19]","z")
    p.wait(vm="ut")
    for k in range(4): p.d(f"ds_write_b128 v7, {vr(64+4*k,4)} offset:{480+1024*k}","z")
    p.wait(lg="all")
    lds_inc(p, LCNT_X)
    ls.n=n1
    p.label("A_gemm2")
    p.vm=[("d",s) for s in range(NRING) for _ in range(2)]
    tag_from_lds(p)
    flag_srd(p, 28)
    p(f"""v_lshlrev_b32 v15, 7, v1
    v_min_u32 v14, {29*128}, v15
    s_lshl_b32 s16, s78, 12
    s_add_u32 s16, s16, {F_H}
    s_lshl_b32 s17, s79, 1
    s_lshr_b32 s20, s78, 4
    s_add_u32 s17, s17, s20
    s_lshl_b32 s17, s17, 13
    s_add_u32 s17, s17, {F_Y}""")
    ls.take(p,'g2in')
    g.preload(ls, (LMARK, lambda p: lds_wait(p, LISS, 4)) if HOLD else None)
    ls.take(p,"wiss")
    u=p.uid()
    p.label(f"ph{u}")
    p(f"""s_mov_b64 exec, 0x3fffffff
    buffer_load_dwordx2 v[20:21], v14, s[28:31], s16 offen sc1
    s_waitcnt vmcnt(0)
    v_cmp_ne_u64 vcc, s[18:19], v[20:21]
    s_mov_b64 exec, -1
    s_cbranch_vccz phok{u}""")
    bound(p, f"phok{u}")
    p(f"""s_sleep 2
    s_branch ph{u}
phok{u}:""")
    p.vm.clear()
    ls.take(p,"hflag")
    while g.pool.free and g.nh<DEPTH: g.ldh()
    R={}
    def late(s):
        if s==2:
            srd(p, 12, P_U, 2048*1024)
            srd(p, 8, P_DSK, 1024)
            tt=g.pool.free[-1]
            p(f"""v_and_b32 v8, 31, v1
            v_lshrrev_b32 v14, 5, v1
            s_lshl_b32 s20, s78, 1
            s_and_b32 s21, s77, 1
            s_add_u32 s20, s20, s21
            s_lshl_b32 s20, s20, 5
            v_add_u32 v10, s20, v8
            s_lshl_b32 s21, s79, 1
            s_lshr_b32 s22, s77, 1
            s_add_u32 s21, s21, s22
            s_lshl_b32 s22, s21, 17
            s_lshl_b32 s21, s21, 6
            v_lshl_add_u32 v11, v14, 5, s21
            v_lshl_add_u32 v7, v10, 10, v11
            v_lshlrev_b32 v10, 2, v10
            s_lshl_b32 s20, s20, 1
            s_add_u32 s22, s22, s20
            v_lshrrev_b32 v12, 2, v1
            v_lshlrev_b32 v12, 12, v12
            v_and_b32 v13, 3, v1
            v_lshl_add_u32 v12, v13, 4, v12
            v_add_u32 v12, s22, v12
            s_lshl_b32 s20, s77, 11
            s_add_u32 s20, s20, {YS}
            v_add_u32 v8, s20, v6
            v_lshlrev_b32 v13, 3, v13
            v_bfe_u32 v{tt}, v1, 4, 1
            v_lshl_add_u32 v13, v{tt}, 5, v13
            v_bfe_u32 v{tt}, v1, 2, 2
            v_lshl_add_u32 v{tt}, v14, 4, v{tt}
            v_lshl_add_u32 v13, v{tt}, 6, v13
            v_add_u32 v13, s20, v13""")
        if s==3:
            R["x"]=g.pool.get(); R["d"]=g.pool.get()
            for k in range(2):
                p.v(f"buffer_load_dwordx4 {vr(R['x']+4*k,4)}, v7, s[12:15], 0 offen offset:{16*k}","e")
                p.v(f"buffer_load_dwordx4 {vr(R['d']+4*k,4)}, v11, s[8:11], 0 offen offset:{16*k}","e")
        if s==12:
            a=g.pool.get(); b=g.pool.get(); R["t"]=[a,b]; c=g.pool.get()
            p.wait(vm="e")
            for k in range(8):
                t=R["t"][k//4]+2*(k%4)
                p(f"v_lshlrev_b32 v{t}, 16, v{R['x']+k}")
                p(f"v_and_b32 v{t+1}, 0xffff0000, v{R['x']+k}")
                p(f"v_lshlrev_b32 v{c}, 16, v{R['d']+k}")
                p(f"v_and_b32 v{c+1}, 0xffff0000, v{R['d']+k}")
                p(f"v_pk_mul_f32 {vr(t,2)}, {vr(t,2)}, {vr(c,2)}")
            R["g"]=c; R["y"]=R["x"]; g.pool.put(R["d"])
            srd(p, 12, P_WS, 512*4096, YT_OFF)
            srd(p, 8, P_WS, 8192, G_OFF)
            p.v(f"buffer_load_dword v{c}, v10, s[8:11], 0 offen{SC}","g")
        if s==YPOLL:
            p.v(f"buffer_load_dwordx2 {vr(R['g']+4,2)}, v15, s[28:31], s17 offen sc1","py")
        if s==YCHK:
            u=p.uid(); q=vr(R['g']+4,2)
            p.wait(vm="py")
            p.label(f"py{u}")
            p(f"""v_cmp_ne_u64 vcc, s[18:19], {q}
            s_cbranch_vccz pyok{u}""")
            bound(p, f"pyok{u}")
            p(f"""s_sleep 2
            buffer_load_dwordx2 {q}, v15, s[28:31], s17 offen sc1
            s_waitcnt vmcnt(0)
            s_branch py{u}
pyok{u}:""")
            ls.take(p,"yflag")
            p(f"s_mov_b32 s20, {16*4096}")
            p.v(f"buffer_load_dwordx4 {vr(R['y'],4)}, v12, s[12:15], 0 offen{SC}","y")
            p.v(f"buffer_load_dwordx4 {vr(R['y']+4,4)}, v12, s[12:15], s20 offen{SC}","y")
        if s in (0,10,21): ls.take(p,f"g{s}")
    g.run(late=late, depth=DEPTH)
    ACC=16
    p("v_mov_b32 v2, v12"); p("v_mov_b32 v3, v13")
    lds_wait(p, LCNT_X, 6)
    p("v_mov_b32 v12, v2"); p("v_mov_b32 v13, v3")
    for z in range(1,4):
        p(f"""s_xor_b32 s20, s77, {z}
        s_mul_i32 s21, s20, 12288
        s_cmp_eq_u32 s20, 3
        s_cselect_b32 s21, {RED3-RED}, s21
        s_add_u32 s21, s21, {RED+(z-1)*4096}
        v_add_u32 v{1+z}, s21, v6""")
    for z in range(1,4):
        for k in range(4):
            p.d(f"ds_write_b128 v{1+z}, {vr(ACC+16*z+4*k,4)} offset:{1024*k}","pw")
    p(f"""s_mul_i32 s20, s77, 12288
    s_cmp_eq_u32 s77, 3
    s_cselect_b32 s20, {RED3-RED}, s20
    s_add_u32 s20, s20, {RED}
    v_add_u32 v14, s20, v6""")
    srd(p, 8, P_OUT, 2048*1024)
    G0=R["g"]; Y=R["y"]
    p.wait(vm="all")
    p.d(f"ds_write_b128 v8, {vr(Y,4)}","y")
    p.d(f"ds_write_b128 v8, {vr(Y+4,4)} offset:1024","y")
    for j in range(4): p.d(f"ds_read_b64_tr_b16 {vr(Y+2*j,2)}, v13 offset:{256*j}","yt")
    p(f"v_mov_b32 v{G0+1}, v{G0}")
    p(f"v_sub_f32 v{G0+2}, 1.0, v{G0}")
    p(f"v_sub_f32 v{G0+3}, 1.0, v{G0}")
    p.wait(lg="all")
    ls.take(p,"pw")
    p("s_barrier")
    ls.take(p,"bar")
    free=[r for r in g.pool.free]
    T=[free[i] for i in range(6)]; A=[free[6],free[7]]
    for z in range(3):
        for k in range(4):
            p.d(f"ds_read_b128 {vr(T[2*z+k//2]+4*(k%2),4)}, v14 offset:{4096*z+1024*k}",("r",z))
    pa=lambda L,k: vr(L[k//4]+2*(k%4),2)
    for k in range(8):
        a=A[k//4]+2*(k%4)
        p(f"v_lshlrev_b32 v{a}, 16, v{Y+k}")
        p(f"v_and_b32 v{a+1}, 0xffff0000, v{Y+k}")
    for k in range(8): p(f"v_pk_add_f32 {pa(A,k)}, {pa(A,k)}, {pa(R['t'],k)}")
    for k in range(8): p(f"v_pk_mul_f32 {pa(A,k)}, {pa(A,k)}, {vr(G0,2)}")
    for z in range(3):
        p.wait(lg=[("r",z)])
        for k in range(8): p(f"v_pk_add_f32 {vr(ACC+2*k,2)}, {vr(ACC+2*k,2)}, {pa(T[2*z:2*z+2],k)}")
    for k in range(8): p(f"v_pk_fma_f32 {pa(A,k)}, {vr(ACC+2*k,2)}, {vr(G0+2,2)}, {pa(A,k)}")
    for k in range(8): p(f"v_cvt_pk_bf16_f32 v{32+k}, v{A[k//4]+2*(k%4)}, v{A[k//4]+2*(k%4)+1}")
    for k in range(2):
        p(f"buffer_store_dwordx4 {vr(32+4*k,4)}, v7, s[8:11], 0 offen offset:{16*k}{SCO}")
    ls.take(p,"st")
    if os.environ.get("DBGT"):
        p(f"""s_waitcnt vmcnt(0)
        s_memrealtime s[98:99]
        s_cmp_ge_u32 s2, 7
        s_cbranch_scc1 nodbg
        s_cmp_lg_u32 s77, 0
        s_cbranch_scc1 nodbg
        s_waitcnt lgkmcnt(0)
        s_lshl_b32 s20, s2, 3
        s_add_u32 s20, s20, 8
        v_mov_b32 v2, s20
        v_mov_b32 v4, s96
        s_sub_u32 s98, s98, s96
        v_mov_b32 v5, s98
        global_store_dwordx2 v2, v[4:5], s[{P_DBG}:{P_DBG+1}]
nodbg:""")
    if ls.on:
        p("s_waitcnt vmcnt(0)")
        ls.take(p,"end"); ls.flush(p,0x40000)
    p("s_endpgm")

def f_post(p, st):
    p.label("A_post")
    lds_inc(p, LISS)
    p(f"v_lshlrev_b32 v18, 4, v{PTID}")
    def emit(ch,Q,Pp):
        p.d(f"ds_write_b128 v18, {vr(Q,4)} offset:{KXL+ch*KX_CH}","kx")
        p.d(f"ds_write_b128 v18, {vr(Pp,4)} offset:{KXL+ch*KX_CH+KXP_OFF}","kx")
    expand_run2(p, PGA, PTID, 20, emit)
    p(f"""v_lshrrev_b32 v19, 2, v1
    v_mul_u32_u24 v19, {KXP_OFF}, v19
    v_and_b32 v16, 3, v1
    v_lshl_add_u32 v19, v16, 4, v19
    v_mov_b32 v88, 0
    v_mov_b32 v89, 0
    v_mov_b32 v90, 0
    v_mov_b32 v91, 0
    s_mov_b64 exec, 0xffff""")
    p.d(f"ds_write_b128 v19, v[88:91] offset:{KXL+4096}","kx")
    p(f"""s_mov_b64 exec, 1
    v_mov_b32 v12, {LCNT_X}
    v_mov_b32 v14, 1""")
    p.wait(lg="all")
    p("ds_add_u32 v12, v14")
    p("s_mov_b64 exec, -1")
    tag_from_lds(p)
    flag_srd(p, 28)
    conv_setup(p, shared=True)
    p(f"""s_lshl_b32 s22, s64, 1
    s_and_b32 s23, s77, 1
    s_add_u32 s22, s22, s23
    s_lshl_b32 s22, s22, 4
    s_add_u32 s22, s22, s65
    s_lshl_b32 s22, s22, 1
    s_add_u32 s22, s22, s20
    s_lshl_b32 s22, s22, 7
    s_add_u32 s22, s22, {F_H}""")
    p("s_waitcnt vmcnt(0)")
    st.take(p,4)
    signal1(p, "s_nop 0")
    lds_wait(p, LCNT_X, 6)
    p.lg.clear()
    conv_main(p, st)
    st.take(p,5)
    conv_finish(p, st, SC)
    p("s_waitcnt vmcnt(0)")
    st.take(p,6)
    signal1(p, f"""s_lshr_b32 s22, s66, 5
    s_lshl_b32 s22, s22, 1
    s_add_u32 s22, s22, s21
    s_lshl_b32 s22, s22, 5
    s_and_b32 s23, s66, 31
    s_add_u32 s22, s22, s23
    s_lshl_b32 s22, s22, 1
    s_add_u32 s22, s22, s20
    s_lshl_b32 s22, s22, 7
    s_add_u32 s22, s22, {F_Y}""")
    st.take(p,7); st.flush(p,8,0)
    p("s_endpgm")

def build_kf(name, stamps=False):
    st=Stamps(stamps)
    ls=LaneStamps(bool(stamps)); build_kf.ls=ls
    class Sel:
        def __init__(s, m): s.m=m
        def take(s,p,k):
            if k in s.m: st.take(p,s.m[k])
    p=Prog()
    ka_prologue(p, st)
    if os.environ.get("DBGT"): p("s_memrealtime s[96:97]")
    p("s_mov_b32 s101, 0x8000")
    if PF:
        p("s_lshl_b32 s29, s63, 3\ns_add_u32 s29, s29, s3\ns_and_b32 s29, s29, 63")
        code_prefetch(p, "ka_start", "ka_end", 29, tmp=226)
    loader_setup(p)
    kgen_loads(p)
    p("""s_waitcnt lgkmcnt(0)
    s_cmp_lt_u32 s3, 4
    s_cbranch_scc1 A_front""")
    tag_publish(p)
    kgen_issue(p)
    p("s_barrier")
    p("s_branch A_helper")
    p.label("A_front")
    p("s_barrier")
    ka_front(p, st)
    p(f"v_mov_b32 v{PTID}, v0")
    expand_index(p, PGA, PTID, 20, KSC)
    p("""s_cmp_eq_u32 s65, 15
    s_cbranch_scc1 A_idle
    s_add_u32 s20, s65, s68
    s_cmp_eq_u32 s20, 15
    s_cbranch_scc1 A_gate""")
    c=Prog(); ka_compute(c, Sel({2:1,4:2,5:3}), SCH, last_sync, lambda p: lds_inc(p, LMARK))
    post=Prog(); f_post(post, st)
    g=Prog(); ka_gate(g, Sel({5:3}), SC, last_sync); g("s_branch A_post")
    def idle_pf(w, s):
        if s==1:
            srd(w, 16, P_WD, 1376*1024)
            w(f"""s_and_b32 s20, s63, 1
            s_lshl_b32 s20, s20, 2
            s_add_u32 s20, s20, s77
            s_lshl_b32 s20, s20, 13
            v_lshlrev_b32 v2, 7, v1""")
            for i in range(IDLEPF):
                w(f"buffer_load_dword v{16+i}, v2, s[16:19], s20 offen")
                w(f"s_add_u32 s20, s20, {8*8192}")
    w=Prog(); ka_idle(w, st, last_sync, idle_pf); w("s_branch A_post")
    h=Prog(); f_helper(h, st, ls)
    lines=p.L+c.L+post.L+g.L+w.L+h.L+["A_exit:","    s_endpgm","ka_end:"]
    return kernel_text(name, lines)
```
